```python
import torch

def _softmax(x, axis=-1):
    return torch.softmax(x, dim=axis)
def _gelu(x):
    return torch.nn.functional.gelu(x, approximate="tanh")
def _silu(x):
    return torch.nn.functional.silu(x)
def _sigmoid(x):
    return torch.sigmoid(x)
def _layernorm(x, axis=-1, eps=1e-5):
    m = x.mean(dim=axis, keepdim=True)
    v = x.var(dim=axis, keepdim=True, unbiased=False)
    return (x - m) / torch.sqrt(v + eps)
def _scatter_add(tgt, idx, src, axis=0):
    return tgt.clone().index_add_(axis, idx, src)
def _segment_sum(src, seg, n):
    out = torch.zeros((n,) + src.shape[1:], dtype=src.dtype)
    return out.index_add_(0, seg, src)
def _pad(x, pw):
    flat = tuple(v for pair in reversed(pw) for v in pair)
    return torch.nn.functional.pad(x, flat)

kernel_name = 'parallel_sum__mha_block_cached__swiglu_ffn__decode'

def setup_inputs():

    _w = (lambda a: (lambda t: t.to(torch.bfloat16) if t.is_floating_point() else t)(torch.as_tensor(a)))
    def _A_setup():
        B, Sq, D = 2, 1, 640
        H, Sk, Dh = 32, 4096, 192
        return {
            "x": _w((lambda *s: torch.randn(*s, dtype=torch.bfloat16) * 0.05)(B, Sq, D)),
            "k_cache": _w((lambda *s: torch.randn(*s, dtype=torch.bfloat16) * 3.2)(B, H, Sk, Dh)),
            "v_cache": _w((lambda *s: torch.randn(*s, dtype=torch.bfloat16) * 1.6)(B, H, Sk, Dh)),
            "wq": _w((lambda *s: torch.randn(*s, dtype=torch.bfloat16) * 3.2)(D, H * Dh) * (D ** -0.5)),
            "wo": _w((lambda *s: torch.randn(*s, dtype=torch.bfloat16) * 1.6)(H * Dh, D) * ((H * Dh) ** -0.5)),
        }
    _A_in = _A_setup()

    def _B_setup():
        B, S, D, F = 2, 1, 640, 1536
        return {
            "x": _w((lambda *s: torch.randn(*s, dtype=torch.bfloat16) * 0.05)(B, S, D)),
            "w_gate": _w((lambda *s: torch.randn(*s, dtype=torch.bfloat16) * 0.05)(D, F)),
            "w_up": _w((lambda *s: torch.randn(*s, dtype=torch.bfloat16) * 0.05)(D, F)),
            "w_down": _w((lambda *s: torch.randn(*s, dtype=torch.bfloat16) * 0.05)(F, D)),
        }
    _B_in = _B_setup()

    return {
        "A_x": _A_in["x"],
        "A_k_cache": _A_in["k_cache"],
        "A_v_cache": _A_in["v_cache"],
        "A_wq": _A_in["wq"],
        "A_wo": _A_in["wo"],
        "B_x": _B_in["x"],
        "B_w_gate": _B_in["w_gate"],
        "B_w_up": _B_in["w_up"],
        "B_w_down": _B_in["w_down"],
    }

def reference(A_x, A_k_cache, A_v_cache, A_wq, A_wo, B_x, B_w_gate, B_w_up, B_w_down):
    def _A_ref(x, k_cache, v_cache, wq, wo):
        B, Sq, D = x.shape
        H, Dh = 32, 192
        q = (lambda x, *d: x.permute(*d))((x @ wq).reshape(B, Sq, H, Dh), 0, 2, 1, 3)
        scores = torch.einsum("bhqd,bhkd->bhqk", q, k_cache) * (Dh ** -0.5)
        p = _softmax(scores, axis=-1)
        o = torch.einsum("bhqk,bhkd->bhqd", p, v_cache)
        return (lambda x, *d: x.permute(*d))(o, 0, 2, 1, 3).reshape(B, Sq, H * Dh) @ wo

    def _B_ref(x, w_gate, w_up, w_down):
        g = _silu(x @ w_gate)
        u = x @ w_up
        return (g * u) @ w_down

    x = A_x
    xn = _layernorm(x, axis=-1)
    return x + _A_ref(xn, A_k_cache, A_v_cache, A_wq, A_wo) + _B_ref(xn, B_w_gate, B_w_up, B_w_down)
```

```python
import sys
NAME="parallel_sum__mha_block_cached__swiglu_ffn__decode_kernel"

Q_L=0; OA_L=512; ACT_L=1536; FIN_L=1664; XN_L=2048; WQ_L=4608; FF_L=35328; WO_L=51712
QFLAG=FIN_L+64; CNT=FIN_L+68; MMAX=FIN_L+72
LDS_SIZE=WO_L+40960
QP=0x1000; FP=0xC2000; OP=0xE0000; YP=0x120000; WS_USED=0x260000
STAMP=0x10000000; DBG=0x11000000
LOG2E=0x3fb8aa3b
SCALE=0x3d93cd3a
POLL_LIMIT=200000

class G:
    def __init__(s): s.L=[]; s.n=0
    def __call__(s,t):
        for x in t.strip("\n").split("\n"):
            x=x.strip()
            if x: s.L.append(x)
    def lab(s,p="L"):
        s.n+=1; return f"{p}_{s.n}"

def gen(fn, stamps=False, dbg=False, nt="nt", mapping="lin", opts=None):
    o=dict(opts or {})
    A=G()
    A(f"; @launch grid=(256,1,1) block=(512,1,1) lds={LDS_SIZE}")
    hdr_mark=len(A.L)
    A('.amdgcn_target "amdgcn-amd-amdhsa--gfx950"')
    A(f".text\n.globl {NAME}\n.p2align 8\n.type {NAME},@function\n{NAME}:")
    nst=[0]
    def stamp(i):
        if stamps: A(f"s_memrealtime s[{80+2*i}:{81+2*i}]")
    def nop(n):
        while n>0:
            k=min(n,16); A(f"s_nop {k-1}"); n-=k
    stamp(0)
    A("""
    s_load_dwordx16 s[4:19], s[0:1], 0
    s_load_dwordx8 s[20:27], s[0:1], 64
    s_cmp_ge_u32 s2, 256
    s_cbranch_scc1 L_end
    v_lshrrev_b32 v2, 6, v0
    v_and_b32 v0, 63, v0
    v_readfirstlane_b32 s48, v2
    s_lshr_b32 s49, s2, 7
    s_lshr_b32 s50, s2, 2
    s_and_b32 s50, s50, 31
    s_and_b32 s51, s2, 3
    s_lshl_b32 s3, s49, 2
    s_add_u32 s51, s51, s3
    """)
    for g in range(16): A(f"s_mov_b32 s{56+g}, {g*3072}")
    if mapping=="lin":
        A("s_mov_b32 s76, s2")
    A("""
    s_mul_i32 s76, s76, 393216
    s_mul_i32 s77, s48, 49152
    s_add_u32 s76, s76, s77
    v_lshrrev_b32 v2, 3, v0
    v_and_b32 v3, 7, v0
    v_mul_u32_u24 v1, 384, v2
    v_lshl_add_u32 v1, v3, 4, v1
    v_add_u32 v1, s76, v1
    """)
    A("""
    s_min_u32 s77, s2, 239
    s_mul_hi_u32 s78, s77, 0x33333334
    s_mul_i32 s79, s78, 5
    s_sub_u32 s79, s77, s79
    """)
    A("s_waitcnt lgkmcnt(0)")
    A("s_load_dword s54, s[26:27], 0")
    A(f"""
    s_mov_b32 s28, s6
    s_and_b32 s29, s7, 0xffff
    s_mov_b32 s30, 100663296
    s_mov_b32 s31, 0x20000
    s_mov_b32 s32, s8
    s_and_b32 s33, s9, 0xffff
    s_mov_b32 s34, 100663296
    s_mov_b32 s35, 0x20000
    s_mov_b32 s36, s26
    s_and_b32 s37, s27, 0xffff
    s_mov_b32 s38, {WS_USED}
    s_mov_b32 s39, 0x20000
    s_mov_b32 s44, s4
    s_and_b32 s45, s5, 0xffff
    s_mov_b32 s46, 2560
    s_mov_b32 s47, 0x20000
    s_mov_b32 s43, 0x20000
    """)
    A("""
    s_cmp_ge_u32 s48, 2
    s_cbranch_scc1 L_nox
    s_mul_i32 s3, s48, 1280
    v_lshl_add_u32 v44, v0, 2, s3
    """)
    for i in range(5): A(f"buffer_load_dword v{112+i}, v44, s[44:47], 0 offen offset:{256*i}")
    A("L_nox:")
    A(f"""
    s_cmp_ge_u32 s48, 5
    s_cbranch_scc1 L_dmaF
    s_mov_b32 s40, s10
    s_and_b32 s41, s11, 0xffff
    s_mov_b32 s42, 7864320
    """)
    for r in range(3):
        A(f"""
        v_add_u32 v45, {64*r}, v0
        v_mul_u32_u24 v46, 2731, v45
        v_lshrrev_b32 v46, 16, v46
        v_mul_u32_u24 v47, 24, v46
        v_sub_u32 v45, v45, v47
        v_mul_u32_u24 v46, 12288, v46
        v_lshl_add_u32 v{48+r}, v45, 4, v46
        """)
    A(f"""
    s_mul_i32 s72, s51, 983040
    s_mul_i32 s3, s50, 384
    s_add_u32 s72, s72, s3
    s_mul_i32 s3, s48, 196608
    s_add_u32 s72, s72, s3
    s_mul_i32 s3, s48, 6144
    s_add_u32 s3, s3, {WQ_L}
    s_mov_b32 m0, s3
    """)
    for t in range(6):
        if t==3: A("s_add_u32 s72, s72, 98304")
        if t>0: A("s_add_u32 m0, m0, 1024")
        A("s_nop 0")
        A(f"buffer_load_dwordx4 v{48+t%3}, s[40:43], s72 offen {nt} lds")
    A("s_branch L_dmaDone")
    A("L_dmaF:")
    A(f"""
    s_cmp_ge_u32 s78, 24
    s_cselect_b32 s40, s18, s16
    s_cselect_b32 s41, s19, s17
    s_cselect_b32 s3, 24, 0
    s_and_b32 s41, s41, 0xffff
    s_mov_b32 s42, 1966080
    s_sub_u32 s3, s78, s3
    s_lshl_b32 s72, s3, 7
    s_mul_i32 s3, s79, 393216
    s_add_u32 s72, s72, s3
    s_sub_u32 s73, s48, 5
    s_mul_i32 s3, s73, 147456
    s_add_u32 s72, s72, s3
    s_mul_i32 s3, s73, 6144
    s_add_u32 s3, s3, {FF_L}
    s_mov_b32 m0, s3
    v_lshrrev_b32 v45, 3, v0
    v_mul_u32_u24 v45, 3072, v45
    v_and_b32 v46, 7, v0
    v_lshl_add_u32 v48, v46, 4, v45
    """)
    for t in range(6):
        if t==4:
            A("s_cmp_eq_u32 s48, 7\ns_cbranch_scc1 L_dmaDone")
        if t>0: A("s_add_u32 m0, m0, 1024\ns_add_u32 s72, s72, 24576")
        A("s_nop 0")
        A(f"buffer_load_dwordx4 v48, s[40:43], s72 offen {nt} lds")
    A("L_dmaDone:")
    def kload(g,j,srd="s[28:31]"):
        r=64+4*(3*g+j)
        A(f"buffer_load_dwordx4 v[{r}:{r+3}], v1, {srd}, s{56+g} offen offset:{128*j} {nt}")
    for g in range(4):
        for j in range(3): kload(g,j)
    stamp(1)
    A(f"""
    s_cmp_eq_u32 s48, 2
    s_cbranch_scc0 L_noinit
    v_mov_b32 v48, 0
    v_mov_b32 v49, 0
    v_mov_b32 v50, 0
    v_mov_b32 v51, 0
    v_lshlrev_b32 v45, 4, v0
    ds_write_b128 v45, v[48:51] offset:{OA_L}
    v_mov_b32 v46, 0xff800000
    v_cmp_eq_u32 vcc, 18, v0
    v_lshlrev_b32 v45, 2, v0
    s_nop 1
    v_cndmask_b32 v46, 0, v46, vcc
    ds_write_b32 v45, v46 offset:{FIN_L}
    L_noinit:
    """)
    def allreduce(op, v, t, dppsteps=("quad_perm:[1,0,3,2]","quad_perm:[2,3,0,1]","row_half_mirror","row_mirror"), p16=True, p32=True):
        for st in dppsteps:
            nop(2)
            A(f"{op}_dpp v{v}, v{v}, v{v} {st} row_mask:0xf bank_mask:0xf")
        if p16:
            A(f"v_mov_b32 v{t}, v{v}"); nop(2)
            A(f"v_permlane16_swap_b32 v{v}, v{t}"); nop(1)
            A(f"{op} v{v}, v{v}, v{t}")
        if p32:
            A(f"v_mov_b32 v{t}, v{v}"); nop(2)
            A(f"v_permlane32_swap_b32 v{v}, v{t}"); nop(1)
            A(f"{op} v{v}, v{v}, v{t}")
    A("""
    s_cmp_ge_u32 s48, 2
    s_cbranch_scc1 L_noln
    s_waitcnt vmcnt(18)
    """)
    X=120
    for i in range(5):
        A(f"v_lshlrev_b32 v{X+2*i}, 16, v{112+i}")
        A(f"v_and_b32 v{X+2*i+1}, 0xffff0000, v{112+i}")
    A(f"v_add_f32 v130, v{X}, v{X+1}")
    for k in range(2,10): A(f"v_add_f32 v130, v130, v{X+k}")
    allreduce("v_add_f32",130,131)
    A("v_mul_f32 v130, 0x3acccccd, v130")
    for k in range(10): A(f"v_sub_f32 v{132+k}, v{X+k}, v130")
    A("v_mul_f32 v142, v132, v132")
    for k in range(1,10): A(f"v_fmac_f32 v142, v{132+k}, v{132+k}")
    allreduce("v_add_f32",142,131)
    A("""
    v_mul_f32 v142, 0x3acccccd, v142
    v_cvt_pk_bf16_f32 v143, v130, v142
    v_lshlrev_b32 v130, 16, v143
    v_and_b32 v142, 0xffff0000, v143
    v_add_f32 v142, 0x3727c5ac, v142
    v_cvt_pk_bf16_f32 v142, v142, v142
    v_lshlrev_b32 v142, 16, v142
    v_sqrt_f32 v142, v142
    s_nop 0
    v_cvt_pk_bf16_f32 v142, v142, v142
    v_lshlrev_b32 v142, 16, v142
    v_rcp_f32 v143, v142
    """)
    for i in range(5):
        A(f"v_sub_f32 v{132+2*i}, v{X+2*i}, v130")
        A(f"v_sub_f32 v{133+2*i}, v{X+2*i+1}, v130")
        A(f"v_cvt_pk_bf16_f32 v{112+i}, v{132+2*i}, v{133+2*i}")
    for i in range(5):
        A(f"v_lshlrev_b32 v{132+2*i}, 16, v{112+i}")
        A(f"v_and_b32 v{133+2*i}, 0xffff0000, v{112+i}")
    for k in range(10):
        A(f"v_mul_f32 v{X+k}, v{132+k}, v143")
    for k in range(10):
        A(f"v_fma_f32 v{132+k}, -v{X+k}, v142, v{132+k}")
    for k in range(10):
        A(f"v_fmac_f32 v{X+k}, v{132+k}, v143")
    A(f"s_mul_i32 s3, s48, 1280\nv_lshl_add_u32 v44, v0, 2, s3")
    for i in range(5):
        A(f"v_cvt_pk_bf16_f32 v{112+i}, v{X+2*i}, v{X+2*i+1}")
    for i in range(5):
        A(f"ds_write_b32 v44, v{112+i} offset:{XN_L+256*i}")
    A("L_noln:")
    A("""
    s_waitcnt vmcnt(12) lgkmcnt(0)
    s_add_u32 s54, s54, 1
    s_and_b32 s52, s54, 0xff
    s_mul_i32 s53, s54, 0x9E3779B1
    s_mov_b32 s55, 0xffffff00
    v_mov_b32 v63, s52
    v_mov_b32 v62, s53
    s_barrier
    """)
    stamp(2)
    A(f"""
    v_lshrrev_b32 v45, 4, v0
    v_bfe_u32 v46, v0, 2, 2
    v_and_b32 v47, 3, v0
    v_and_b32 v48, 1, v0
    v_lshl_add_u32 v49, v45, 3, v46
    v_mul_u32_u24 v50, 384, v49
    v_lshl_add_u32 v50, v47, 3, v50
    v_lshl_add_u32 v51, v45, 2, v46
    v_mul_u32_u24 v51, 384, v51
    v_lshl_add_u32 v51, v47, 3, v51
    s_lshl_b32 s3, s48, 5
    v_add_u32 v50, s3, v50
    v_add_u32 v51, s3, v51
    v_mul_u32_u24 v52, 1280, v48
    s_mul_i32 s3, s51, 160
    v_add_u32 v53, s3, v52
    v_lshl_add_u32 v54, v45, 3, v53
    v_lshl_add_u32 v53, v45, 4, v53
    """)
    T0=112
    A(f"""
    ds_read_b128 v[{T0}:{T0+3}], v53 offset:{XN_L}
    ds_read_b128 v[{T0+4}:{T0+7}], v53 offset:{XN_L+64}
    ds_read_b64 v[{T0+8}:{T0+9}], v54 offset:{XN_L+128}
    """)
    def qtile(off, D, Ab):
        A(f"""
        ds_read_b64_tr_b16 v[{Ab}:{Ab+1}], v50 offset:{WQ_L+off}
        ds_read_b64_tr_b16 v[{Ab+2}:{Ab+3}], v50 offset:{WQ_L+off+1536}
        ds_read_b64_tr_b16 v[{Ab+4}:{Ab+5}], v50 offset:{WQ_L+off+12288}
        ds_read_b64_tr_b16 v[{Ab+6}:{Ab+7}], v50 offset:{WQ_L+off+13824}
        ds_read_b64_tr_b16 v[{Ab+8}:{Ab+9}], v51 offset:{WQ_L+off+24576}
        """)
    def qmfma(D,Ab):
        A(f"""
        v_mfma_f32_16x16x32_bf16 v[{D}:{D+3}], v[{Ab}:{Ab+3}], v[{T0}:{T0+3}], 0
        v_mfma_f32_16x16x32_bf16 v[{D}:{D+3}], v[{Ab+4}:{Ab+7}], v[{T0+4}:{T0+7}], v[{D}:{D+3}]
        """)
        nop(6)
        A(f"v_mfma_f32_16x16x16_bf16 v[{D}:{D+3}], v[{Ab+8}:{Ab+9}], v[{T0+8}:{T0+9}], v[{D}:{D+3}]")
    A(f"""
    s_lshl_b32 s3, s50, 3
    s_add_u32 s3, s3, s51
    s_mul_i32 s3, s3, 3072
    s_lshl_b32 s72, s48, 7
    s_add_u32 s3, s3, s72
    s_add_u32 s3, s3, {QP}
    v_mul_u32_u24 v55, 1536, v48
    v_lshl_add_u32 v55, v45, 5, v55
    v_add_u32 v55, s3, v55
    """)
    def qstore(D, extra):
        A(f"""
        v_mov_b32 v56, v{D}
        v_mov_b32 v57, v62
        v_mov_b32 v58, v{D+1}
        v_mov_b32 v59, v62
        buffer_store_dwordx4 v[56:59], v55, s[36:39], 0 offen offset:{extra} sc1
        v_mov_b32 v40, v{D+2}
        v_mov_b32 v41, v62
        v_mov_b32 v42, v{D+3}
        v_mov_b32 v43, v62
        buffer_store_dwordx4 v[40:43], v55, s[36:39], 0 offen offset:{extra+16} sc1
        """)
    qtile(0, 144, 124)
    A("s_cmp_ge_u32 s48, 4\ns_cbranch_scc1 L_ffn0")
    qtile(256, 148, 134)
    A("s_waitcnt lgkmcnt(5)")
    qmfma(144,124)
    A("s_waitcnt lgkmcnt(0)")
    qmfma(148,134)
    nop(8)
    A("s_mov_b32 exec_lo, 0x00030003\ns_mov_b32 exec_hi, 0x00030003")
    qstore(144,0)
    nop(2)
    qstore(148,1024)
    A("s_mov_b64 exec, -1")
    A("s_branch L_p0done")
    A("L_ffn0:")
    A(f"""
    v_lshlrev_b32 v50, 7, v49
    v_lshl_add_u32 v50, v47, 3, v50
    s_sub_u32 s73, s48, 4
    s_lshl_b32 s3, s73, 5
    v_add_u32 v50, s3, v50
    s_lshl_b32 s3, s79, 8
    v_add_u32 v53, s3, v52
    v_lshl_add_u32 v53, v45, 4, v53
    """)
    def ffr(s_):
        A(f"ds_read_b128 v[{152+4*s_}:{155+4*s_}], v53 offset:{XN_L+64*s_}")
        A(f"ds_read_b64_tr_b16 v[{168+4*s_}:{169+4*s_}], v50 offset:{FF_L+4096*s_}")
        A(f"ds_read_b64_tr_b16 v[{170+4*s_}:{171+4*s_}], v50 offset:{FF_L+4096*s_+512}")
    A("s_waitcnt lgkmcnt(0)")
    for s_ in range(4): ffr(s_)
    qmfma(144,124)
    A("s_waitcnt lgkmcnt(0)")
    for s_ in range(4):
        c = "0" if s_==0 else "v[148:151]"
        A(f"v_mfma_f32_16x16x32_bf16 v[148:151], v[{168+4*s_}:{171+4*s_}], v[{152+4*s_}:{155+4*s_}], {c}")
    A(f"""
    s_mul_i32 s3, s78, 5
    s_add_u32 s3, s3, s79
    s_lshl_b32 s3, s3, 9
    s_lshl_b32 s72, s73, 6
    s_add_u32 s3, s3, s72
    s_add_u32 s3, s3, {FP}
    v_lshlrev_b32 v60, 8, v48
    v_lshl_add_u32 v60, v45, 4, v60
    v_add_u32 v60, s3, v60
    """)
    nop(4)
    A("s_mov_b32 exec_lo, 0x00030003\ns_mov_b32 exec_hi, 0x00030003")
    qstore(144,0)
    for k in range(4): A(f"v_bfi_b32 v{148+k}, s55, v{148+k}, v63")
    A("buffer_store_dwordx4 v[148:151], v60, s[36:39], 0 offen sc1")
    A("s_mov_b64 exec, -1")
    A("L_p0done:")
    stamp(3)
    A("s_cmp_eq_u32 s48, 0\ns_cbranch_scc0 L_kb2")
    A(f"""
    s_mul_i32 s3, s50, 24576
    s_mul_i32 s72, s49, 1536
    s_add_u32 s3, s3, s72
    s_add_u32 s3, s3, {QP}
    v_lshl_add_u32 v44, v0, 4, s3
    v_and_b32 v45, 31, v0
    v_lshlrev_b32 v45, 4, v45
    v_add_u32 v45, s3, v45
    v_add_u32 v45, 1024, v45
    s_mov_b32 s74, 0
    L_qpoll:
    """)
    for jj in range(8):
        A(f"buffer_load_dwordx4 v[{112+8*jj}:{115+8*jj}], v44, s[36:39], s{56+jj} offen sc1")
        A(f"buffer_load_dwordx4 v[{116+8*jj}:{119+8*jj}], v45, s[36:39], s{56+jj} offen sc1")
    A("s_waitcnt vmcnt(0)")
    A("v_xor_b32 v46, v113, v62")
    first=True
    for k in range(16):
        for d in (1,3):
            if first: first=False; continue
            A(f"v_bitop3_b32 v46, v46, v{112+4*k+d}, v62 bitop3:0xf6")
    A(f"""
    v_cmp_ne_u32 vcc, 0, v46
    s_add_u32 s74, s74, 1
    s_nop 3
    s_cmp_eq_u64 vcc, 0
    s_cbranch_scc1 L_qok
    s_cmp_lt_u32 s74, {POLL_LIMIT}
    s_cbranch_scc0 L_qto
    s_sleep 4
    s_branch L_qpoll
    L_qto:
    v_mov_b32 v46, 0x101
    v_mov_b32 v47, 0
    global_store_dword v47, v46, s[24:25]
    L_qok:
    """)
    for d in (0,2):
        for half in (0,4):
            for jj in range(1,8):
                A(f"v_add_f32 v{112+half+d}, v{112+half+d}, v{112+8*jj+half+d}")
    A(f"""
    v_cvt_pk_bf16_f32 v46, v112, v114
    v_cvt_pk_bf16_f32 v47, v116, v118
    v_lshlrev_b32 v48, 2, v0
    v_and_b32 v49, 31, v0
    v_lshlrev_b32 v49, 2, v49
    ds_write_b32 v48, v46 offset:{Q_L}
    ds_write_b32 v49, v47 offset:{Q_L+256}
    v_mov_b32 v46, 1
    v_mov_b32 v47, 0
    ds_write_b32 v47, v46 offset:{QFLAG}
    """)
    A("L_kb2:")
    for g in range(4,16):
        for j in range(3): kload(g,j)
    stamp(4)
    def ldsspin(addr, val, vt=46, va=47):
        l=A.lab("L_spin"); d=A.lab("L_spind")
        A(f"""
        v_mov_b32 v{va}, 0
        s_mov_b32 s74, 0
        {l}:
        ds_read_b32 v{vt}, v{va} offset:{addr}
        s_waitcnt lgkmcnt(0)
        v_readfirstlane_b32 s3, v{vt}
        s_add_u32 s74, s74, 1
        s_nop 2
        s_cmp_eq_u32 s3, {val}
        s_cbranch_scc1 {d}
        s_cmp_lt_u32 s74, {POLL_LIMIT*20}
        s_cbranch_scc0 {d}
        s_sleep 2
        s_branch {l}
        {d}:
        """)
    ldsspin(QFLAG,1)
    A(f"""
    v_and_b32 v46, 7, v0
    v_lshlrev_b32 v46, 4, v46
    ds_read_b128 v[4:7], v46 offset:{Q_L}
    ds_read_b128 v[8:11], v46 offset:{Q_L+128}
    ds_read_b128 v[12:15], v46 offset:{Q_L+256}
    s_waitcnt lgkmcnt(0)
    """)
    stamp(5)
    for st in range(4):
        A("s_waitcnt vmcnt(36)")
        gs=[4*st+k for k in range(4)]
        for j in range(3):
            for v in range(4):
                for g in gs:
                    kr=64+4*(3*g+j)+v
                    c = "0" if (j==0 and v==0) else f"v{16+g}"
                    A(f"v_dot2_f32_bf16 v{16+g}, v{kr}, v{4+4*j+v}, {c}")
        for g in gs:
            for j in range(3): kload(g,j,"s[32:35]")
        for pat in ("quad_perm:[1,0,3,2]","quad_perm:[2,3,0,1]","row_half_mirror"):
            for g in gs:
                A(f"v_add_f32_dpp v{16+g}, v{16+g}, v{16+g} {pat} row_mask:0xf bank_mask:0xf")
        g0=gs[0]
        A(f"""
        v_cvt_pk_bf16_f32 v44, v{16+g0}, v{17+g0}
        v_cvt_pk_bf16_f32 v45, v{18+g0}, v{19+g0}
        v_lshlrev_b32 v46, 16, v44
        v_and_b32 v47, 0xffff0000, v44
        v_lshlrev_b32 v48, 16, v45
        v_and_b32 v49, 0xffff0000, v45
        v_mul_f32 v46, {SCALE:#x}, v46
        v_mul_f32 v47, {SCALE:#x}, v47
        v_mul_f32 v48, {SCALE:#x}, v48
        v_mul_f32 v49, {SCALE:#x}, v49
        v_cvt_pk_bf16_f32 v44, v46, v47
        v_cvt_pk_bf16_f32 v45, v48, v49
        v_lshlrev_b32 v{16+g0}, 16, v44
        v_and_b32 v{17+g0}, 0xffff0000, v44
        v_lshlrev_b32 v{18+g0}, 16, v45
        v_and_b32 v{19+g0}, 0xffff0000, v45
        """)
    A("v_max3_f32 v44, v16, v17, v18")
    for k in range(19,31,2): A(f"v_max3_f32 v44, v44, v{k}, v{k+1}")
    A("v_max_f32 v44, v44, v31")
    allreduce("v_max_f32",44,45,dppsteps=("row_ror:8",))
    A(f"""
    v_mov_b32 v45, 0
    v_mov_b32 v46, 1
    s_mov_b64 exec, 1
    ds_max_f32 v45, v44 offset:{MMAX}
    ds_add_u32 v45, v46 offset:{CNT}
    s_mov_b64 exec, -1
    """)
    stamp(6)
    A("s_cmp_eq_u32 s48, 1\ns_cbranch_scc0 L_noffn")
    A(f"""
    s_cmp_ge_u32 s2, 192
    s_cbranch_scc1 L_ffnz
    s_lshr_b32 s3, s2, 3
    s_mul_i32 s3, s3, 2560
    s_and_b32 s72, s2, 7
    s_lshl_b32 s72, s72, 5
    s_add_u32 s3, s3, s72
    s_add_u32 s3, s3, {FP}
    v_bfe_u32 v44, v0, 2, 1
    v_mul_u32_u24 v44, 61440, v44
    v_bfe_u32 v45, v0, 1, 1
    v_lshl_add_u32 v44, v45, 8, v44
    v_and_b32 v45, 1, v0
    v_lshl_add_u32 v44, v45, 4, v44
    v_add_u32 v44, s3, v44
    s_mov_b32 s74, 0
    L_fpoll:
    """)
    FR=[32,36,48,52,56]
    for ks in range(5): A(f"buffer_load_dwordx4 v[{FR[ks]}:{FR[ks]+3}], v44, s[36:39], 0 offen offset:{512*ks} sc1")
    A("s_waitcnt vmcnt(0)")
    A("v_xor_b32 v45, v32, v63")
    for ks in range(5):
        for d in range(4):
            if ks==0 and d==0: continue
            A(f"v_bitop3_b32 v45, v45, v{FR[ks]+d}, v63 bitop3:0xf6")
    A(f"""
    v_and_b32 v45, 0xff, v45
    v_cmp_ne_u32 vcc, 0, v45
    s_add_u32 s74, s74, 1
    s_nop 3
    s_cmp_eq_u64 vcc, 0
    s_cbranch_scc1 L_fok
    s_cmp_lt_u32 s74, {POLL_LIMIT}
    s_cbranch_scc0 L_fto
    s_sleep 4
    s_branch L_fpoll
    L_fto:
    v_mov_b32 v46, 0x102
    v_mov_b32 v47, 4
    global_store_dword v47, v46, s[24:25]
    L_fok:
    """)
    for d in range(4):
        for ks in range(1,5): A(f"v_add_f32 v{32+d}, v{32+d}, v{FR[ks]+d}")
    A("""
    v_cvt_pk_bf16_f32 v36, v32, v33
    v_cvt_pk_bf16_f32 v37, v34, v35
    v_lshlrev_b32 v32, 16, v36
    v_and_b32 v33, 0xffff0000, v36
    v_lshlrev_b32 v34, 16, v37
    v_and_b32 v35, 0xffff0000, v37
    """)
    for d in range(4): A(f"v_mul_f32 v{48+d}, 0xbfb8aa3b, v{32+d}")
    for d in range(4): A(f"v_exp_f32 v{48+d}, v{48+d}")
    for d in range(4): A(f"v_mov_b32_dpp v{52+d}, v{32+d} row_ror:4 row_mask:0xf bank_mask:0xf")
    for d in range(4): A(f"v_add_f32 v{48+d}, 1.0, v{48+d}")
    for d in range(4): A(f"v_rcp_f32 v{48+d}, v{48+d}")
    nop(1)
    for d in range(4): A(f"v_mul_f32 v{48+d}, v{32+d}, v{48+d}")
    A("""
    v_cvt_pk_bf16_f32 v36, v48, v49
    v_cvt_pk_bf16_f32 v37, v50, v51
    v_lshlrev_b32 v48, 16, v36
    v_and_b32 v49, 0xffff0000, v36
    v_lshlrev_b32 v50, 16, v37
    v_and_b32 v51, 0xffff0000, v37
    """)
    for d in range(4): A(f"v_mul_f32 v{48+d}, v{48+d}, v{52+d}")
    A(f"""
    v_cvt_pk_bf16_f32 v36, v48, v49
    v_cvt_pk_bf16_f32 v37, v50, v51
    s_branch L_ffnw
    L_ffnz:
    v_mov_b32 v36, 0
    v_mov_b32 v37, 0
    L_ffnw:
    v_bfe_u32 v44, v0, 1, 1
    v_lshlrev_b32 v44, 6, v44
    v_and_b32 v45, 1, v0
    v_lshl_add_u32 v44, v45, 3, v44
    s_mov_b64 exec, 0x0f
    ds_write_b64 v44, v[36:37] offset:{ACT_L+48}
    s_mov_b64 exec, -1
    L_noffn:
    """)
    ldsspin(CNT,8)
    A(f"""
    ds_read_b32 v44, v47 offset:{MMAX}
    s_mov_b32 s72, {LOG2E:#x}
    s_waitcnt lgkmcnt(0)
    v_mul_f32 v45, s72, v44
    """)
    for g in range(16): A(f"v_fma_f32 v{16+g}, v{16+g}, s72, -v45")
    for g in range(16): A(f"v_exp_f32 v{16+g}, v{16+g}")
    A(f"""
    v_lshlrev_b32 v46, 5, v0
    s_mov_b32 exec_hi, 0
    ds_write_b32 v46, v44 offset:{OA_L+12}
    s_mov_b32 exec_hi, -1
    v_add_f32 v45, v16, v17
    """)
    for g in range(2,16): A(f"v_add_f32 v45, v45, v{16+g}")
    for g in range(16): A(f"v_cvt_pk_bf16_f32 v{16+g}, v{16+g}, v{16+g}")
    allreduce("v_add_f32",45,47,dppsteps=("row_ror:8",))
    A(f"""
    s_mov_b32 exec_hi, 0
    ds_add_f32 v46, v45 offset:{OA_L+16+12}
    s_mov_b32 exec_hi, -1
    """)
    A("v_and_b32 v44, 7, v0")
    for v in range(4):
        A(f"""
        v_cmp_eq_u32 vcc, {2*v}, v44
        v_mov_b32 v45, 0xffff
        v_cmp_eq_u32 s[72:73], {2*v+1}, v44
        v_mov_b32 v46, 0xffff0000
        v_cndmask_b32 v{40+v}, 0, v45, vcc
        s_nop 0
        v_cndmask_b32 v{40+v}, v{40+v}, v46, s[72:73]
        """)
    stamp(7)
    for g in range(16):
        B=32+4*(g&1)
        for v in range(4): A(f"v_and_b32 v{B+v}, v{16+g}, v{40+v}")
        A(f"s_waitcnt vmcnt({45-3*g})")
        nop(1)
        for j in range(3):
            vr=64+4*(3*g+j)
            c = "0" if g==0 else f"v[{4+4*j}:{7+4*j}]"
            A(f"v_mfma_f32_16x16x32_bf16 v[{4+4*j}:{7+4*j}], v[{vr}:{vr+3}], v[{B}:{B+3}], {c}")
        if g==4:
            A("""
            v_bfe_u32 v44, v0, 4, 1
            v_and_b32 v45, 7, v0
            v_lshl_add_u32 v44, v44, 5, v45
            """)
            for j in range(3):
                for rho in range(4):
                    A(f"""
                    v_add_u32 v45, {64*j+8*rho}, v44
                    v_mul_u32_u24 v46, 21846, v45
                    v_lshrrev_b32 v46, 16, v46
                    v_add_lshl_u32 v{64+4*j+rho}, v45, v46, 2
                    """)
            A("""
            v_bfe_u32 v44, v0, 3, 1
            v_bfe_u32 v45, v0, 5, 1
            v_cmp_eq_u32 s[76:77], v44, v45
            """)
    nop(8)
    A("s_mov_b64 exec, s[76:77]")
    for j in range(3):
        for rho in range(4):
            A(f"ds_add_f32 v{64+4*j+rho}, v{4+4*j+rho} offset:{OA_L}")
    A("s_mov_b64 exec, -1")
    stamp(8) if False else None
    A(f"""
    s_cmp_ge_u32 s48, 4
    s_cbranch_scc1 L_nodma
    s_cmp_eq_u32 s48, 3
    s_cselect_b32 s40, s20, s12
    s_cselect_b32 s41, s21, s13
    s_mov_b32 s42, 7864320
    s_cselect_b32 s42, 1966080, s42
    s_and_b32 s41, s41, 0xffff
    s_mul_i32 s72, s50, 192
    s_mul_i32 s3, s51, 24
    s_add_u32 s72, s72, s3
    s_lshl_b32 s3, s48, 3
    s_add_u32 s72, s72, s3
    s_min_u32 s3, s2, 191
    s_lshl_b32 s3, s3, 3
    s_cmp_eq_u32 s48, 3
    s_cselect_b32 s72, s3, s72
    s_mul_i32 s72, s72, 1280
    s_and_b32 s3, s48, 1
    s_lshl_b32 s3, s3, 1
    v_bfe_u32 v44, v0, 4, 1
    v_or_b32 v44, s3, v44
    v_lshlrev_b32 v44, 1, v44
    v_and_b32 v45, 7, v0
    v_xor_b32 v44, v44, v45
    v_lshlrev_b32 v44, 4, v44
    v_lshrrev_b32 v45, 3, v0
    v_mul_u32_u24 v45, 1280, v45
    v_add_u32 v44, v44, v45
    s_lshl_b32 s3, s48, 10
    s_add_u32 s3, s3, {WO_L}
    s_mov_b32 m0, s3
    """)
    for cbk in range(10):
        if cbk>0: A("s_add_u32 m0, m0, 4096\ns_add_u32 s72, s72, 128")
        A("s_nop 0")
        A(f"buffer_load_dwordx4 v44, s[40:43], s72 offen {nt} lds")
    A("L_nodma:")
    A(f"""
    v_lshrrev_b32 v45, 4, v0
    v_bfe_u32 v46, v0, 2, 2
    v_and_b32 v47, 3, v0
    v_lshl_add_u32 v48, v45, 3, v46
    v_lshlrev_b32 v48, 7, v48
    v_lshl_add_u32 v48, v47, 3, v48
    v_bfe_u32 v49, v0, 3, 1
    v_bfe_u32 v50, v0, 4, 1
    v_lshl_or_b32 v49, v50, 1, v49
    s_mul_i32 s72, s48, 5
    """)
    for tt in range(5):
        A(f"""
        s_add_u32 s3, s72, {tt}
        s_and_b32 s73, s3, 3
        s_lshr_b32 s3, s3, 2
        s_lshl_b32 s3, s3, 12
        v_xor_b32 v50, s73, v49
        v_lshl_add_u32 v50, v50, 5, v48
        v_add_u32 v{80+tt}, s3, v50
        """)
    A(f"""
    v_and_b32 v46, 1, v0
    v_lshlrev_b32 v85, 6, v46
    v_lshl_add_u32 v85, v45, 4, v85
    s_mul_i32 s3, s48, 81920
    s_lshl_b32 s72, s2, 6
    s_add_u32 s3, s3, s72
    s_add_u32 s3, s3, {YP}
    v_mul_u32_u24 v86, 655360, v46
    v_lshl_add_u32 v86, v45, 4, v86
    v_add_u32 v86, s3, v86
    """)
    A("s_waitcnt lgkmcnt(0)\ns_barrier")
    if stamps: A("s_memrealtime s[96:97]")
    A("s_cmp_eq_u32 s48, 4\ns_cbranch_scc0 L_nohop1")
    A(f"""
    v_lshlrev_b32 v44, 4, v0
    ds_read_b128 v[48:51], v44 offset:{OA_L}
    s_lshl_b32 s3, s50, 13
    s_lshl_b32 s72, s51, 7
    s_add_u32 s72, s72, s3
    s_add_u32 s72, s72, {OP}
    v_lshrrev_b32 v45, 3, v0
    v_lshlrev_b32 v45, 10, v45
    v_and_b32 v46, 7, v0
    v_lshl_add_u32 v45, v46, 4, v45
    v_add_u32 v45, s72, v45
    s_lshl_b32 s72, s51, 10
    s_add_u32 s72, s72, s3
    s_add_u32 s72, s72, {OP}
    v_add_u32 v46, s72, v44
    s_waitcnt lgkmcnt(0)
    """)
    for k in range(4): A(f"v_bfi_b32 v{48+k}, s55, v{48+k}, v63")
    A(f"""
    buffer_store_dwordx4 v[48:51], v45, s[36:39], 0 offen sc1
    s_mov_b32 s74, 0
    s_mov_b32 s76, 0xaaaaaaaa
    s_mov_b32 s77, 0xaaaaaaaa
    L_opoll:
    buffer_load_dwordx4 v[52:55], v46, s[36:39], 0 offen sc1
    s_waitcnt vmcnt(0)
    v_xor_b32 v47, v52, v63
    v_bitop3_b32 v47, v47, v53, v63 bitop3:0xf6
    v_bitop3_b32 v47, v47, v54, v63 bitop3:0xf6
    v_bitop3_b32 v47, v47, v55, v63 bitop3:0xf6
    v_and_b32 v47, 0xff, v47
    v_cmp_ne_u32 vcc, 0, v47
    s_add_u32 s74, s74, 1
    s_nop 3
    s_cmp_eq_u64 vcc, 0
    s_cbranch_scc1 L_ook
    s_cmp_lt_u32 s74, {POLL_LIMIT}
    s_cbranch_scc0 L_oto
    s_branch L_opoll
    L_oto:
    v_mov_b32 v56, 0x103
    v_mov_b32 v57, 8
    global_store_dword v57, v56, s[24:25]
    L_ook:
    v_and_b32 v55, s55, v55
    s_nop 1
    v_mov_b32_dpp v56, v55 quad_perm:[1,0,3,2] row_mask:0xf bank_mask:0xf
    s_nop 0
    v_cndmask_b32 v57, v55, v56, s[76:77]
    v_cndmask_b32 v58, v56, v55, s[76:77]
    v_mov_b32 v59, v57
    """)
    allreduce("v_max_f32",59,60,dppsteps=("row_ror:8",),p32=False)
    A(f"""
    v_sub_f32 v57, v57, v59
    v_mul_f32 v57, {LOG2E:#x}, v57
    v_exp_f32 v57, v57
    s_nop 0
    v_mul_f32 v58, v58, v57
    v_mul_f32 v52, v52, v57
    v_mul_f32 v53, v53, v57
    v_mul_f32 v54, v54, v57
    s_nop 0
    """)
    for r in (58,52,53,54): A(f"v_add_f32_dpp v{r}, v{r}, v{r} row_ror:8 row_mask:0xf bank_mask:0xf")
    for k,r in enumerate((58,52,53,54)): A(f"v_mov_b32 v{48+k}, v{r}")
    nop(1)
    for k,r in enumerate((58,52,53,54)): A(f"v_permlane16_swap_b32 v{r}, v{48+k}")
    nop(1)
    for k,r in enumerate((58,52,53,54)): A(f"v_add_f32 v{r}, v{r}, v{48+k}")
    A(f"""
    v_rcp_f32 v58, v58
    v_lshrrev_b32 v44, 5, v0
    v_lshlrev_b32 v44, 6, v44
    v_and_b32 v45, 7, v0
    v_mul_u32_u24 v45, 6, v45
    v_add_u32 v44, v44, v45
    v_mul_f32 v52, v52, v58
    v_mul_f32 v53, v53, v58
    v_mul_f32 v54, v54, v58
    v_cvt_pk_bf16_f32 v52, v52, v53
    v_cvt_pk_bf16_f32 v54, v54, v54
    ds_write_b16 v44, v52 offset:{ACT_L}
    ds_write_b16_d16_hi v44, v52 offset:{ACT_L+2}
    ds_write_b16 v44, v54 offset:{ACT_L+4}
    L_nohop1:
    s_waitcnt vmcnt(0) lgkmcnt(0)
    s_barrier
    """)
    if stamps: A("s_memrealtime s[98:99]")
    A(f"ds_read_b128 v[88:91], v85 offset:{ACT_L}")
    for tt in range(5):
        A(f"ds_read_b64_tr_b16 v[{92+4*tt}:{93+4*tt}], v{80+tt} offset:{WO_L}")
        A(f"ds_read_b64_tr_b16 v[{94+4*tt}:{95+4*tt}], v{80+tt} offset:{WO_L+512}")
    for tt in range(5):
        A(f"s_waitcnt lgkmcnt({8-2*tt})")
        A(f"v_mfma_f32_16x16x32_bf16 v[{112+4*tt}:{115+4*tt}], v[{92+4*tt}:{95+4*tt}], v[88:91], 0")
    nop(4)
    A("s_mov_b32 exec_lo, 0x00030003\ns_mov_b32 exec_hi, 0x00030003")
    for tt in range(5):
        if tt==4: nop(4)
        for k in range(4): A(f"v_bfi_b32 v{112+4*tt+k}, s55, v{112+4*tt+k}, v63")
        A(f"s_mov_b32 s3, {16384*tt}")
        A(f"buffer_store_dwordx4 v[{112+4*tt}:{115+4*tt}], v86, s[36:39], s3 offen sc1")
    A("s_mov_b64 exec, -1")
    A(f"""
    s_cmp_ge_u32 s2, 80
    s_cbranch_scc1 L_fin
    s_lshl_b32 s3, s2, 14
    s_lshl_b32 s72, s48, 11
    s_add_u32 s3, s3, s72
    s_add_u32 s3, s3, {YP}
    v_lshl_add_u32 v44, v0, 4, s3
    s_cmp_ge_u32 s2, 40
    s_cselect_b32 s72, 40, 0
    s_cselect_b32 s73, 1280, 0
    s_sub_u32 s72, s2, s72
    s_lshl_b32 s72, s72, 5
    s_add_u32 s72, s72, s73
    v_and_b32 v45, 7, v0
    v_lshl_add_u32 v45, v45, 2, s72
    buffer_load_dword v60, v45, s[44:47], 0 offen
    s_mov_b32 s74, 0
    L_ypoll:
    buffer_load_dwordx4 v[48:51], v44, s[36:39], 0 offen sc1
    buffer_load_dwordx4 v[52:55], v44, s[36:39], 0 offen offset:1024 sc1
    s_waitcnt vmcnt(0)
    v_xor_b32 v47, v48, v63
    """)
    for k in range(49,56): A(f"v_bitop3_b32 v47, v47, v{k}, v63 bitop3:0xf6")
    A(f"""
    v_and_b32 v47, 0xff, v47
    v_cmp_ne_u32 vcc, 0, v47
    s_add_u32 s74, s74, 1
    s_nop 3
    s_cmp_eq_u64 vcc, 0
    s_cbranch_scc1 L_yok
    s_cmp_lt_u32 s74, {POLL_LIMIT}
    s_cbranch_scc0 L_yto
    s_branch L_ypoll
    L_yto:
    v_mov_b32 v56, 0x104
    v_mov_b32 v57, 12
    global_store_dword v57, v56, s[24:25]
    L_yok:
    """)
    for k in range(4): A(f"v_add_f32 v{48+k}, v{48+k}, v{52+k}")
    for pat in ("row_ror:8","row_ror:4"):
        nop(1) if False else None
        for k in range(4): A(f"v_add_f32_dpp v{48+k}, v{48+k}, v{48+k} {pat} row_mask:0xf bank_mask:0xf") if True else None
    A(f"""
    v_and_b32 v46, 3, v0
    v_lshlrev_b32 v46, 4, v46
    s_mov_b32 exec_lo, 0x000f000f
    s_mov_b32 exec_hi, 0x000f000f
    """)
    for k in range(4): A(f"ds_add_f32 v46, v{48+k} offset:{FIN_L+4*k}")
    A(f"""
    s_mov_b64 exec, -1
    s_waitcnt lgkmcnt(0)
    s_barrier
    s_cmp_eq_u32 s48, 0
    s_cbranch_scc0 L_fin
    v_and_b32 v46, 7, v0
    v_lshlrev_b32 v46, 3, v46
    ds_read_b64 v[48:49], v46 offset:{FIN_L}
    v_lshlrev_b32 v50, 16, v60
    v_and_b32 v51, 0xffff0000, v60
    s_mov_b32 s44, s22
    s_and_b32 s45, s23, 0xffff
    s_waitcnt lgkmcnt(0)
    v_add_f32 v48, v48, v50
    v_add_f32 v49, v49, v51
    v_cvt_pk_bf16_f32 v48, v48, v49
    s_mov_b64 exec, 0xff
    buffer_store_dword v48, v45, s[44:47], 0 offen
    s_cmp_eq_u32 s2, 0
    s_cbranch_scc0 L_fin
    v_mov_b32 v46, s54
    v_mov_b32 v47, 0
    s_mov_b64 exec, 1
    buffer_store_dword v46, v47, s[36:39], 0 offen
    L_fin:
    s_mov_b64 exec, -1
    """)
    if stamps:
        A("s_memrealtime s[100:101]\ns_waitcnt lgkmcnt(0)")
        A(f"""
        s_lshl_b32 s3, s2, 3
        s_add_u32 s3, s3, s48
        s_lshl_b32 s3, s3, 7
        s_add_u32 s3, s3, {STAMP}
        v_mov_b32 v44, s3
        s_getreg_b32 s72, hwreg(HW_REG_XCC_ID)
        s_mov_b64 exec, 1
        """)
        for k in range(0,22,2):
            A(f"v_mov_b32 v46, s{80+k}\nv_mov_b32 v47, s{81+k}\nglobal_store_dwordx2 v44, v[46:47], s[26:27] offset:{4*k}\ns_nop 1")
        A("v_mov_b32 v46, s72\nv_mov_b32 v47, 0\nglobal_store_dwordx2 v44, v[46:47], s[26:27] offset:88")
    A("L_end:\ns_endpgm")
    A(f""".section .rodata,"a"
    .p2align 6
    .amdhsa_kernel {NAME}
    .amdhsa_next_free_vgpr 256
    .amdhsa_next_free_sgpr 102
    .amdhsa_accum_offset 256
    .amdhsa_group_segment_fixed_size 0
    .amdhsa_kernarg_size 96
    .amdhsa_user_sgpr_count 2
    .amdhsa_user_sgpr_kernarg_segment_ptr 1
    .amdhsa_system_sgpr_workgroup_id_x 1
    .amdhsa_float_denorm_mode_32 3
    .end_amdhsa_kernel""")
    open(fn,"w").write("\n".join(A.L)+"\n")

if __name__=="__main__":
    exec(sys.argv[1] if len(sys.argv)>1 else 'gen("k1.s"); gen("k1s.s", stamps=True)')
```

```python
import sys
NAME="parallel_sum__mha_block_cached__swiglu_ffn__decode_kernel"

Q_L=0; FINP_L=512; ACT_L=1536; FIN_L=1664; XN_L=2048; WQ_L=4608; FF_L=35328; WO_L=51712
PART_L=WQ_L; PART_W=1792; PART_P=896
QFLAG=FIN_L+64; CNT=FIN_L+68; MMAX=FIN_L+72; XFLAG=FIN_L+80
LDS_SIZE=WO_L+40960
QP=0x1000; FP=0xC2000; OP=0xE0000; YP=0x120000; PROG=0x260000; XC=0x261000; WS_USED=0x262000
STAMP=0x10000000; DBG=0x11000000
LOG2E=0x3fb8aa3b
SCALE=0x3d93cd3a
POLL_LIMIT=200000

HEADER = """; Kernarg layout for this problem (96 bytes, ptrs only, base s[0:1]):
;
"""

class G:
    def __init__(s): s.L=[]; s.n=0
    def __call__(s,t):
        for x in t.strip("\n").split("\n"):
            x=x.strip()
            if x: s.L.append(x)
    def lab(s,p="L"):
        s.n+=1; return f"{p}_{s.n}"

def gen(fn, stamps=False, dbg=False, nt="nt", opts=None):
    o=dict(opts or {})
    A=G()
    if not stamps:
        for l in HEADER.strip("\n").split("\n"): A.L.append(l)
    A(f"; @launch grid=(256,1,1) block=(512,1,1) lds={LDS_SIZE}")
    hdr_mark=len(A.L)
    if stamps: A("; stamps: "+",".join(o.get("slist",["start","bar1","p0done","kb2","qready","Kdone","Vstart","barA","barB","ystored","end"])))
    A('.amdgcn_target "amdgcn-amd-amdhsa--gfx950"')
    A(f".text\n.globl {NAME}\n.p2align 8\n.type {NAME},@function\n{NAME}:")
    nst=[0]
    slist=o.get("slist",["start","bar1","p0done","kb2","qready","Kdone","Vstart","barA","barB","ystored","end"])
    def stamp(nm):
        if stamps and nm in slist:
            i=slist.index(nm); A(f"s_memrealtime s[{80+2*i}:{81+2*i}]")
    def stampstr(nm):
        if stamps and nm in slist:
            i=slist.index(nm); return f"s_memrealtime s[{80+2*i}:{81+2*i}]"
        return ""
    def nop(n):
        while n>0:
            k=min(n,16); A(f"s_nop {k-1}"); n-=k
    stamp("start")
    A("""
    s_load_dwordx16 s[4:19], s[0:1], 0
    s_load_dwordx8 s[20:27], s[0:1], 64
    s_cmp_ge_u32 s2, 256
    s_cbranch_scc1 L_end
    s_setprio 3
    v_lshrrev_b32 v2, 6, v0
    v_and_b32 v0, 63, v0
    v_readfirstlane_b32 s48, v2
    """)
    mapping=o.get("map","lin"); IL=o.get("il",False)
    if mapping=="lin": A("s_mov_b32 s76, s2")
    elif mapping=="xcd":
        A("s_and_b32 s76, s2, 7\ns_lshr_b32 s3, s2, 6\ns_lshl_b32 s3, s3, 3\ns_add_u32 s76, s76, s3\ns_lshl_b32 s76, s76, 2\ns_lshr_b32 s3, s2, 3\ns_and_b32 s72, s3, 3\ns_add_u32 s76, s76, s72\ns_bfe_u32 s3, s2, 0x10005\ns_lshl_b32 s3, s3, 7\ns_add_u32 s76, s76, s3")
    elif mapping=="xcd2":
        A("s_and_b32 s76, s2, 7\ns_lshl_b32 s76, s76, 2\ns_lshr_b32 s3, s2, 6\ns_add_u32 s76, s76, s3\ns_lshl_b32 s76, s76, 2\ns_lshr_b32 s3, s2, 3\ns_and_b32 s72, s3, 3\ns_add_u32 s76, s76, s72\ns_bfe_u32 s3, s2, 0x10005\ns_lshl_b32 s3, s3, 7\ns_add_u32 s76, s76, s3")
    elif mapping=="xcd3":
        A("s_and_b32 s76, s2, 31\ns_lshl_b32 s76, s76, 2\ns_lshr_b32 s3, s2, 5\ns_and_b32 s72, s3, 3\ns_add_u32 s76, s76, s72\ns_lshr_b32 s3, s2, 7\ns_lshl_b32 s3, s3, 7\ns_add_u32 s76, s76, s3")
    elif mapping=="blk": A("s_and_b32 s76, s2, 7\ns_lshl_b32 s76, s76, 5\ns_lshr_b32 s3, s2, 3\ns_add_u32 s76, s76, s3")
    A("""
    s_lshr_b32 s49, s76, 7
    s_lshr_b32 s50, s76, 2
    s_and_b32 s50, s50, 31
    s_and_b32 s51, s76, 3
    s_lshl_b32 s3, s49, 2
    s_add_u32 s51, s51, s3
    """)
    GS=24576 if IL else 3072
    A(f"""
    s_mul_i32 s76, s76, 393216
    s_mul_i32 s77, s48, {3072 if IL else 49152}
    s_add_u32 s76, s76, s77
    v_lshrrev_b32 v2, 3, v0
    v_and_b32 v3, 7, v0
    v_mul_u32_u24 v1, 384, v2
    v_lshl_add_u32 v1, v3, 4, v1
    v_add_u32 v1, s76, v1
    """)
    A("""
    s_min_u32 s77, s2, 239
    s_mul_hi_u32 s78, s77, 0x33333334
    s_mul_i32 s79, s78, 5
    s_sub_u32 s79, s77, s79
    """)
    A(f"""
    s_mul_i32 s3, s48, 1280
    v_lshl_add_u32 v44, v0, 2, s3
    s_mov_b32 s30, 100663296
    s_mov_b32 s31, 0x20000
    s_mov_b32 s34, 100663296
    s_mov_b32 s35, 0x20000
    s_mov_b32 s38, {WS_USED}
    s_mov_b32 s39, 0x20000
    s_mov_b32 s46, 2560
    s_mov_b32 s47, 0x20000
    s_mov_b32 s43, 0x20000
    s_cmp_ge_u32 s48, 5
    s_cbranch_scc1 L_preF
    """)
    for r in range(3):
        A(f"""
        v_add_u32 v45, {64*r}, v0
        v_mul_u32_u24 v46, 2731, v45
        v_lshrrev_b32 v46, 16, v46
        v_mul_u32_u24 v47, 24, v46
        v_sub_u32 v45, v45, v47
        v_mul_u32_u24 v46, 12288, v46
        v_lshl_add_u32 v{48+r}, v45, 4, v46
        """)
    A(f"""
    s_mul_i32 s72, s51, 983040
    s_mul_i32 s3, s50, 384
    s_add_u32 s72, s72, s3
    s_mul_i32 s3, s48, 196608
    s_add_u32 s72, s72, s3
    s_mul_i32 s3, s48, 6144
    s_add_u32 s3, s3, {WQ_L}
    s_mov_b32 m0, s3
    s_mov_b32 s42, 7864320
    s_branch L_preD
    L_preF:
    s_cmp_ge_u32 s78, 24
    s_cselect_b32 s3, 24, 0
    s_sub_u32 s3, s78, s3
    s_lshl_b32 s72, s3, 7
    s_mul_i32 s3, s79, 393216
    s_add_u32 s72, s72, s3
    s_sub_u32 s73, s48, 5
    s_mul_i32 s3, s73, 147456
    s_add_u32 s72, s72, s3
    s_mul_i32 s3, s73, 6144
    s_add_u32 s3, s3, {FF_L}
    s_mov_b32 m0, s3
    v_lshrrev_b32 v45, 3, v0
    v_mul_u32_u24 v45, 3072, v45
    v_and_b32 v46, 7, v0
    v_lshl_add_u32 v48, v46, 4, v45
    v_mov_b32 v49, v48
    v_mov_b32 v50, v48
    s_mov_b32 s42, 1966080
    L_preD:
    s_waitcnt lgkmcnt(0)
    """)
    stamp("ka")
    A("""
    s_load_dword s54, s[26:27], 0
    s_cmp_ge_u32 s48, 2
    s_cbranch_scc1 L_nox
    s_mov_b32 s44, s4
    s_and_b32 s45, s5, 0xffff
    """)
    for i in range(5): A(f"buffer_load_dword v{112+i}, v44, s[44:47], 0 offen offset:{256*i}")
    A("L_nox:")
    A(f"""
    s_cmp_ge_u32 s48, 5
    s_cbranch_scc1 L_dmaF
    s_mov_b32 s40, s10
    s_and_b32 s41, s11, 0xffff
    """)
    for t in range(6):
        if t==3: A("s_add_u32 s72, s72, 98304")
        if t>0: A("s_add_u32 m0, m0, 1024")
        A("s_nop 0")
        A(f"buffer_load_dwordx4 v{48+t%3}, s[40:43], s72 offen {nt} lds")
    A("s_branch L_dmaDone")
    A("L_dmaF:")
    A("""
    s_cmp_ge_u32 s78, 24
    s_cselect_b32 s40, s18, s16
    s_cselect_b32 s41, s19, s17
    s_and_b32 s41, s41, 0xffff
    s_cmp_ge_u32 s2, 240
    s_cbranch_scc1 L_dmaDone
    """)
    for t in range(6):
        if t==4:
            A("s_cmp_eq_u32 s48, 7\ns_cbranch_scc1 L_dmaDone")
        if t>0: A("s_add_u32 m0, m0, 1024\ns_add_u32 s72, s72, 24576")
        A("s_nop 0")
        A(f"buffer_load_dwordx4 v48, s[40:43], s72 offen {nt} lds")
    A("L_dmaDone:")
    A("""
    s_mov_b32 s28, s6
    s_and_b32 s29, s7, 0xffff
    s_mov_b32 s32, s8
    s_and_b32 s33, s9, 0xffff
    s_mov_b32 s36, s26
    s_and_b32 s37, s27, 0xffff
    s_mov_b32 s44, s4
    s_and_b32 s45, s5, 0xffff
    """)
    rot=o.get("rot","hash")
    if rot=="none":
        for g in range(16): A(f"s_mov_b32 s{56+g}, {g*GS}")
    else:
        A("s_nop 4")
        if rot=="hash":
            A("s_lshl_b32 s74, s2, 3\ns_add_u32 s74, s74, s48\ns_mul_i32 s74, s74, 0x9E3779B1\ns_lshr_b32 s74, s74, 20")
        elif isinstance(rot,tuple):
            a_,b_,c_=rot
            A(f"s_lshr_b32 s74, s2, 3\ns_mul_i32 s74, s74, {a_}\ns_mul_i32 s75, s48, {b_}\ns_add_u32 s74, s74, s75\ns_and_b32 s75, s2, 7\ns_mul_i32 s75, s75, {c_}\ns_add_u32 s74, s74, s75")
        elif rot=="wgw":
            A("s_lshr_b32 s74, s2, 3\ns_lshl_b32 s75, s48, 1\ns_add_u32 s74, s74, s75")
        for g in range(16): A(f"s_add_u32 s75, s74, {g}\ns_and_b32 s75, s75, 15\ns_mul_i32 s{56+g}, s75, {GS}")
    stamp("dma0")
    def kload(g,j,srd="s[28:31]"):
        r=64+4*(3*g+j)
        A(f"buffer_load_dwordx4 v[{r}:{r+3}], v1, {srd}, s{56+g} offen offset:{128*j} {nt}")
    NB1=o.get("nb1",2)
    B1W=o.get("b1w",0)
    if o.get("bar0",True) and not B1W: A("s_barrier")
    if not B1W:
        for g in range(NB1):
            for j in range(3): kload(g,j)
    stamp("b1")
    A(f"""
    s_cmp_eq_u32 s48, 2
    s_cbranch_scc0 L_noinit
    v_mov_b32 v46, 0xff800000
    v_cmp_eq_u32 vcc, 18, v0
    v_lshlrev_b32 v45, 2, v0
    s_nop 1
    v_cndmask_b32 v46, 0, v46, vcc
    ds_write_b32 v45, v46 offset:{FIN_L}
    L_noinit:
    """)
    def allreduce(op, v, t, dppsteps=("quad_perm:[1,0,3,2]","quad_perm:[2,3,0,1]","row_half_mirror","row_mirror"), p16=True, p32=True):
        for st in dppsteps:
            nop(2)
            A(f"{op}_dpp v{v}, v{v}, v{v} {st} row_mask:0xf bank_mask:0xf")
        if p16:
            A(f"v_mov_b32 v{t}, v{v}"); nop(2)
            A(f"v_permlane16_swap_b32 v{v}, v{t}"); nop(1)
            A(f"{op} v{v}, v{v}, v{t}")
        if p32:
            A(f"v_mov_b32 v{t}, v{v}"); nop(2)
            A(f"v_permlane32_swap_b32 v{v}, v{t}"); nop(1)
            A(f"{op} v{v}, v{v}, v{t}")
    A("""
    s_cmp_ge_u32 s48, 2
    s_cbranch_scc1 L_noln
    s_waitcnt vmcnt(@@)
    """.replace("@@",str(6 if B1W else 6+3*NB1)))
    X=120
    for i in range(5):
        A(f"v_lshlrev_b32 v{X+2*i}, 16, v{112+i}")
        A(f"v_and_b32 v{X+2*i+1}, 0xffff0000, v{112+i}")
    A(f"v_add_f32 v130, v{X}, v{X+1}")
    for k in range(2,10): A(f"v_add_f32 v130, v130, v{X+k}")
    allreduce("v_add_f32",130,131)
    A("v_mul_f32 v130, 0x3acccccd, v130")
    for k in range(10): A(f"v_sub_f32 v{132+k}, v{X+k}, v130")
    A("v_mul_f32 v142, v132, v132")
    for k in range(1,10): A(f"v_fmac_f32 v142, v{132+k}, v{132+k}")
    allreduce("v_add_f32",142,131)
    A("""
    v_mul_f32 v142, 0x3acccccd, v142
    v_cvt_pk_bf16_f32 v143, v130, v142
    v_lshlrev_b32 v130, 16, v143
    v_and_b32 v142, 0xffff0000, v143
    v_add_f32 v142, 0x3727c5ac, v142
    v_cvt_pk_bf16_f32 v142, v142, v142
    v_lshlrev_b32 v142, 16, v142
    v_sqrt_f32 v142, v142
    s_nop 0
    v_cvt_pk_bf16_f32 v142, v142, v142
    v_lshlrev_b32 v142, 16, v142
    v_rcp_f32 v143, v142
    """)
    for i in range(5):
        A(f"v_sub_f32 v{132+2*i}, v{X+2*i}, v130")
        A(f"v_sub_f32 v{133+2*i}, v{X+2*i+1}, v130")
        A(f"v_cvt_pk_bf16_f32 v{112+i}, v{132+2*i}, v{133+2*i}")
    for i in range(5):
        A(f"v_lshlrev_b32 v{132+2*i}, 16, v{112+i}")
        A(f"v_and_b32 v{133+2*i}, 0xffff0000, v{112+i}")
    for k in range(10):
        A(f"v_mul_f32 v{X+k}, v{132+k}, v143")
    for k in range(10):
        A(f"v_fma_f32 v{132+k}, -v{X+k}, v142, v{132+k}")
    for k in range(10):
        A(f"v_fmac_f32 v{X+k}, v{132+k}, v143")
    A(f"s_mul_i32 s3, s48, 1280\nv_lshl_add_u32 v44, v0, 2, s3")
    for i in range(5):
        A(f"v_cvt_pk_bf16_f32 v{112+i}, v{X+2*i}, v{X+2*i+1}")
    for i in range(5):
        A(f"ds_write_b32 v44, v{112+i} offset:{XN_L+256*i}")
    A("L_noln:")
    stamp("ln")
    if B1W:
        for g in range(NB1):
            for j in range(3):
                A(f"s_waitcnt vmcnt({B1W-1})"); kload(g,j)
    NW=0
    if o.get("warm"):
        NW=2
        A(f"""
        v_mov_b32 v44, 0
        s_cmp_eq_u32 s48, 2
        s_cbranch_scc0 L_wm3
        global_load_dword v240, v44, s[22:23]
        s_mul_i32 s3, s50, 245760
        s_mul_i32 s72, s51, 30720
        s_add_u32 s3, s3, s72
        v_mov_b32 v45, s3
        global_load_dword v241, v45, s[12:13]
        s_branch L_wmd
        L_wm3:
        s_cmp_eq_u32 s48, 3
        s_cbranch_scc0 L_wm4
        s_min_u32 s3, s2, 191
        s_mul_i32 s3, s3, 10240
        v_mov_b32 v46, s3
        global_load_dword v240, v46, s[20:21]
        buffer_load_dword v241, v1, s[32:35], 0 offen
        s_branch L_wmd
        L_wm4:
        s_cmp_eq_u32 s48, 4
        s_cbranch_scc0 L_wm5
        s_lshl_b32 s3, s50, 13
        s_lshl_b32 s72, s51, 10
        s_add_u32 s3, s3, s72
        s_add_u32 s3, s3, {OP}
        v_lshl_add_u32 v47, v0, 4, s3
        buffer_load_dword v240, v47, s[36:39], 0 offen sc1
        v_lshlrev_b32 v47, 15, v0
        v_min_u32 v47, {39*32768}, v47
        s_lshl_b32 s3, s2, 7
        s_add_u32 s3, s3, {YP}
        v_add_u32 v47, s3, v47
        buffer_load_dword v241, v47, s[36:39], 0 offen sc1
        s_branch L_wmd
        L_wm5:
        s_getpc_b64 s[72:73]
        L_pc0:
        s_add_u32 s72, s72, L_codewarm_from-L_pc0
        s_addc_u32 s73, s73, 0
        v_lshlrev_b32 v44, 7, v0
        v_min_u32 v44, L_end-L_codewarm_from, v44
        global_load_dword v240, v44, s[72:73]
        v_add_u32 v44, 64, v44
        v_min_u32 v44, L_end-L_codewarm_from, v44
        global_load_dword v241, v44, s[72:73]
        L_wmd:
        """)
    A(f"s_waitcnt vmcnt({3*NB1+NW}) lgkmcnt(0)")
    A("""
    s_add_u32 s3, s54, 1
    s_mul_i32 s53, s3, 0x9E3779B1
    s_bfe_u32 s3, s53, 0x90010
    s_add_u32 s3, s3, 16
    s_add_u32 s3, s3, s54
    s_and_b32 s52, s3, 0x3ff
    s_lshr_b32 s54, s54, 10
    s_add_u32 s54, s54, 1
    s_lshl_b32 s54, s54, 10
    s_or_b32 s54, s54, s52
    s_mov_b32 s55, 0xfffffc00
    v_mov_b32 v63, s52
    v_mov_b32 v62, s53
    s_barrier
    """)
    stamp("bar1")
    A("""
    s_cmp_eq_u32 s48, 0
    s_cbranch_scc1 L_p0done
    s_cmp_eq_u32 s48, 7
    s_cbranch_scc1 L_p0x
    """)
    A(f"""
    v_lshrrev_b32 v45, 4, v0
    v_bfe_u32 v46, v0, 2, 2
    v_and_b32 v47, 3, v0
    v_and_b32 v48, 1, v0
    v_lshl_add_u32 v49, v45, 3, v46
    v_mul_u32_u24 v52, 1280, v48
    s_cmp_ge_u32 s48, 5
    s_cbranch_scc1 L_ffn0c
    v_mul_u32_u24 v50, 384, v49
    v_lshl_add_u32 v50, v47, 3, v50
    v_lshl_add_u32 v51, v45, 2, v46
    v_mul_u32_u24 v51, 384, v51
    v_lshl_add_u32 v51, v47, 3, v51
    s_sub_u32 s73, s48, 1
    s_mul_i32 s3, s73, 96
    v_add_u32 v50, s3, v50
    v_add_u32 v51, s3, v51
    s_mul_i32 s3, s51, 160
    v_add_u32 v53, s3, v52
    v_lshl_add_u32 v54, v45, 3, v53
    v_lshl_add_u32 v53, v45, 4, v53
    """)
    T0=112
    A(f"""
    ds_read_b128 v[{T0}:{T0+3}], v53 offset:{XN_L}
    ds_read_b128 v[{T0+4}:{T0+7}], v53 offset:{XN_L+64}
    ds_read_b64 v[{T0+8}:{T0+9}], v54 offset:{XN_L+128}
    """)
    def qtile(off, Ab):
        A(f"""
        ds_read_b64_tr_b16 v[{Ab}:{Ab+1}], v50 offset:{WQ_L+off}
        ds_read_b64_tr_b16 v[{Ab+2}:{Ab+3}], v50 offset:{WQ_L+off+1536}
        ds_read_b64_tr_b16 v[{Ab+4}:{Ab+5}], v50 offset:{WQ_L+off+12288}
        ds_read_b64_tr_b16 v[{Ab+6}:{Ab+7}], v50 offset:{WQ_L+off+13824}
        ds_read_b64_tr_b16 v[{Ab+8}:{Ab+9}], v51 offset:{WQ_L+off+24576}
        """)
    def qmfma(D,Ab):
        A(f"""
        v_mfma_f32_16x16x32_bf16 v[{D}:{D+3}], v[{Ab}:{Ab+3}], v[{T0}:{T0+3}], 0
        v_mfma_f32_16x16x32_bf16 v[{D}:{D+3}], v[{Ab+4}:{Ab+7}], v[{T0+4}:{T0+7}], v[{D}:{D+3}]
        s_nop 5
        v_mfma_f32_16x16x16_bf16 v[{D}:{D+3}], v[{Ab+8}:{Ab+9}], v[{T0+8}:{T0+9}], v[{D}:{D+3}]
        """)
    A(f"""
    s_lshl_b32 s3, s50, 3
    s_add_u32 s3, s3, s51
    s_mul_i32 s3, s3, 3072
    s_mul_i32 s72, s73, 384
    s_add_u32 s3, s3, s72
    s_add_u32 s3, s3, {QP}
    v_mul_u32_u24 v55, 1536, v48
    v_lshl_add_u32 v55, v45, 5, v55
    v_add_u32 v55, s3, v55
    """)
    QFULL=o.get("qfull",True)
    SC=o.get("qsc","sc1")
    if QFULL:
        A("""
        v_bfe_u32 v56, v0, 1, 1
        v_lshl_add_u32 v55, v56, 4, v55
        v_cmp_eq_u32 s[74:75], 1, v56
        """)
    def qstore(D, extra, t):
        a=56 if t%2==0 else 32
        if QFULL:
            A(f"""
            v_cndmask_b32 v{a}, v{D}, v{D+2}, s[74:75]
            v_mov_b32 v{a+1}, v62
            v_cndmask_b32 v{a+2}, v{D+1}, v{D+3}, s[74:75]
            v_mov_b32 v{a+3}, v62
            buffer_store_dwordx4 v[{a}:{a+3}], v55, s[36:39], 0 offen offset:{extra} {SC}
            """)
            return
        A(f"""
        v_mov_b32 v{a}, v{D}
        v_mov_b32 v{a+1}, v62
        v_mov_b32 v{a+2}, v{D+1}
        v_mov_b32 v{a+3}, v62
        buffer_store_dwordx4 v[{a}:{a+3}], v55, s[36:39], 0 offen offset:{extra} {SC}
        v_mov_b32 v{40}, v{D+2}
        v_mov_b32 v{41}, v62
        v_mov_b32 v{42}, v{D+3}
        v_mov_b32 v{43}, v62
        buffer_store_dwordx4 v[40:43], v55, s[36:39], 0 offen offset:{extra+16} {SC}
        """)
    qtile(0,124); qtile(32,134)
    A("s_waitcnt lgkmcnt(5)")
    qmfma(160,124)
    qtile(64,144)
    A("s_waitcnt lgkmcnt(5)")
    qmfma(164,134)
    A("s_waitcnt lgkmcnt(0)")
    qmfma(168,144)
    if o.get("test_qdelay"):
        A("s_bitcmp1_b32 s2, 5\ns_cbranch_scc0 L_tq")
        for _ in range(o["test_qdelay"]): A("s_sleep 100")
        A("L_tq:")
    if QFULL: A("s_mov_b32 exec_lo, 0x000f000f\ns_mov_b32 exec_hi, 0x000f000f")
    else: A("s_mov_b32 exec_lo, 0x00030003\ns_mov_b32 exec_hi, 0x00030003")
    nop(2)
    qstore(160,0,0)
    nop(2)
    qstore(164,128,1)
    nop(2)
    qstore(168,256,0)
    A("s_mov_b64 exec, -1")
    A("s_branch L_p0done")
    A("L_ffn0c:\ns_cmp_ge_u32 s2, 240\ns_cbranch_scc1 L_p0done\nL_ffn0:")
    A(f"""
    v_lshlrev_b32 v50, 7, v49
    v_lshl_add_u32 v50, v47, 3, v50
    s_sub_u32 s73, s48, 5
    s_lshl_b32 s3, s73, 6
    v_add_u32 v50, s3, v50
    s_lshl_b32 s3, s79, 8
    v_add_u32 v53, s3, v52
    v_lshl_add_u32 v53, v45, 4, v53
    """)
    for s_ in range(4): A(f"ds_read_b128 v[{112+4*s_}:{115+4*s_}], v53 offset:{XN_L+64*s_}")
    def fft(tt):
        for s_ in range(4):
            A(f"ds_read_b64_tr_b16 v[{128+16*tt+4*s_}:{129+16*tt+4*s_}], v50 offset:{FF_L+4096*s_+32*tt}")
            A(f"ds_read_b64_tr_b16 v[{130+16*tt+4*s_}:{131+16*tt+4*s_}], v50 offset:{FF_L+4096*s_+512+32*tt}")
    def ffm(tt):
        for s_ in range(4):
            D=160+4*tt
            c = "0" if s_==0 else f"v[{D}:{D+3}]"
            A(f"v_mfma_f32_16x16x32_bf16 v[{D}:{D+3}], v[{128+16*tt+4*s_}:{131+16*tt+4*s_}], v[{112+4*s_}:{115+4*s_}], {c}")
    fft(0)
    A(f"""
    s_mul_i32 s3, s78, 5
    s_add_u32 s3, s3, s79
    s_lshl_b32 s3, s3, 9
    s_lshl_b32 s72, s73, 7
    s_add_u32 s3, s3, s72
    s_add_u32 s3, s3, {FP}
    v_lshlrev_b32 v60, 8, v48
    v_lshl_add_u32 v60, v45, 4, v60
    v_add_u32 v60, s3, v60
    s_waitcnt lgkmcnt(0)
    """)
    fft(1)
    ffm(0)
    A("s_waitcnt lgkmcnt(0)")
    ffm(1)
    if o.get("test_fdelay"):
        A("s_bitcmp1_b32 s2, 4\ns_cbranch_scc0 L_tf")
        for _ in range(o["test_fdelay"]): A("s_sleep 100")
        A("L_tf:")
    A("s_mov_b32 exec_lo, 0x00030003\ns_mov_b32 exec_hi, 0x00030003")
    nop(4)
    for k in range(4): A(f"v_bfi_b32 v{160+k}, s55, v{160+k}, v63")
    A("buffer_store_dwordx4 v[160:163], v60, s[36:39], 0 offen sc1")
    nop(2)
    for k in range(4): A(f"v_bfi_b32 v{164+k}, s55, v{164+k}, v63")
    A("buffer_store_dwordx4 v[164:167], v60, s[36:39], 0 offen offset:64 sc1")
    A("s_mov_b64 exec, -1")
    if o.get("xfast"):
        A(f"""
        s_branch L_p0done
        L_p0x:
        s_getreg_b32 s3, hwreg(HW_REG_XCC_ID)
        s_and_b32 s3, s3, 15
        v_mov_b32 v56, s3
        v_mov_b32 v57, v62
        v_mov_b32 v58, s3
        v_mov_b32 v59, v62
        s_lshl_b32 s3, s50, 3
        s_add_u32 s3, s3, s51
        s_lshl_b32 s3, s3, 4
        s_add_u32 s3, s3, {XC}
        v_mov_b32 v55, s3
        s_mov_b64 exec, 1
        buffer_store_dwordx4 v[56:59], v55, s[36:39], 0 offen sc1
        s_mov_b64 exec, -1
        """)
    else:
        A("L_p0x:")
    A("L_p0done:")
    stamp("p0done")
    if o.get("bar1b",True): A("s_barrier")
    W=o.get("W",3)
    DM=o.get("dma","pre")
    XQ=o.get("xq",12)
    PT=o.get("ptick",6)
    A("s_setprio 0")
    def ldsspin(addr, val, vt=46, va=47):
        l=A.lab("L_spin"); d=A.lab("L_spind")
        A(f"""
        v_mov_b32 v{va}, 0
        s_mov_b32 s74, 0
        {l}:
        ds_read_b32 v{vt}, v{va} offset:{addr}
        s_waitcnt lgkmcnt(0)
        v_readfirstlane_b32 s3, v{vt}
        s_add_u32 s74, s74, 1
        s_nop 2
        s_cmp_eq_u32 s3, {val}
        s_cbranch_scc1 {d}
        s_cmp_lt_u32 s74, {POLL_LIMIT*20}
        s_cbranch_scc0 {d}
        s_sleep 1
        s_branch {l}
        {d}:
        """)
    AD=o.get("adapt")
    WF=AD["fast"] if AD else None
    FLAG=FIN_L+76
    PAT=o.get("pat",(0,0,0))
    def pload(g,j,srd,cnt):
        if cnt==Wcur[0]-1: cnt+=PAT[j]
        if AD and cnt==Wcur[0]-1 and WF>Wcur[0]:
            l=A.lab("L_w")
            A(f"s_waitcnt vmcnt({WF-1})\ns_bitcmp1_b32 s10, 0\ns_cbranch_scc1 {l}\ns_waitcnt vmcnt({cnt})\n{l}:")
        elif AD and cnt>Wcur[0]-1 and WF>Wcur[0]:
            A(f"s_waitcnt vmcnt({cnt})")
        else:
            A(f"s_waitcnt vmcnt({cnt})")
        kload(g,j,srd)
    Wcur=[W]
    def flagtick(first=False):
        if not AD: return
        if not first:
            A("s_waitcnt lgkmcnt(0)\nv_readfirstlane_b32 s10, v58")
        A(f"ds_read_b32 v58, v49 offset:{FLAG}")
    def cp_issue(c):
        l=A.lab("L_cp")
        A(f"""
        s_cmp_eq_u32 s48, 7
        s_cbranch_scc0 {l}
        s_add_u32 s3, s53, {c+1}
        v_mov_b32 v54, s3
        s_mov_b64 exec, 1
        buffer_store_dword v54, v55, s[36:39], 0 offen sc1
        s_mov_b64 exec, -1
        buffer_load_dwordx4 v[50:53], v48, s[36:39], 0 offen sc1
        {l}:
        """)
    def cp_use(c):
        l=A.lab("L_cu")
        A(f"""
        s_cmp_eq_u32 s48, 7
        s_cbranch_scc0 {l}
        s_add_u32 s3, s53, {c+1}
        v_subrev_u32 v50, s3, v50
        v_subrev_u32 v51, s3, v51
        v_subrev_u32 v52, s3, v52
        v_subrev_u32 v53, s3, v53
        v_cmp_gt_u32 s[72:73], 32, v50
        v_cmp_gt_u32 s[74:75], 32, v51
        v_cmp_gt_u32 s[18:19], 32, v52
        v_cmp_gt_u32 s[16:17], 32, v53
        s_nop 3
        s_bcnt1_i32_b64 s3, s[72:73]
        s_bcnt1_i32_b64 s72, s[74:75]
        s_add_u32 s3, s3, s72
        s_bcnt1_i32_b64 s72, s[18:19]
        s_add_u32 s3, s3, s72
        s_bcnt1_i32_b64 s72, s[16:17]
        s_add_u32 s3, s3, s72
        s_cmp_ge_u32 s3, {AD["th"]}
        s_cselect_b32 s3, 1, 0
        v_mov_b32 v54, s3
        s_mov_b64 exec, 1
        ds_write_b32 v49, v54 offset:{FLAG}
        s_mov_b64 exec, -1
        {l}:
        """)
    def cphooks(T):
        if not AD: return
        if T in AD["cps"]: cp_issue(AD["cps"].index(T))
        if T-2 in AD["cps"]: cp_use(AD["cps"].index(T-2))
    KS="s[28:31]"; VS="s[32:35]"
    def kproc(a,b):
        for j in range(3):
            for v in range(4):
                for g in (a,b):
                    kr=64+4*(3*g+j)+v
                    c = "0" if (j==0 and v==0) else f"v{16+g}"
                    A(f"v_dot2_f32_bf16 v{16+g}, v{kr}, v{4+4*j+v}, {c}")
        A("s_nop 1")
        for k,pat in enumerate(("quad_perm:[1,0,3,2]","quad_perm:[2,3,0,1]","row_half_mirror")):
            for g in (a,b):
                A(f"v_add_f32_dpp v{16+g}, v{16+g}, v{16+g} {pat} row_mask:0xf bank_mask:0xf")
            if k<2: A("s_nop 0")
        A(f"""
        v_cvt_pk_bf16_f32 v44, v{16+a}, v{16+b}
        v_lshlrev_b32 v45, 16, v44
        v_and_b32 v46, 0xffff0000, v44
        v_mul_f32 v45, {SCALE:#x}, v45
        v_mul_f32 v46, {SCALE:#x}, v46
        v_cvt_pk_bf16_f32 v44, v45, v46
        v_lshlrev_b32 v{16+a}, 16, v44
        v_and_b32 v{16+b}, 0xffff0000, v44
        """)
    def vproc(g, wait=None):
        B=32+4*(g&1)
        for v in range(4): A(f"v_and_b32 v{B+v}, v{16+g}, v{40+v}")
        if wait is not None:
            A(f"s_waitcnt vmcnt({wait})")
            if g==15: stamp("V15")
            nop(1)
        else: nop(2)
        for j in range(3):
            vr=64+4*(3*g+j)
            c = "0" if g==0 else f"v[{4+4*j}:{7+4*j}]"
            A(f"v_mfma_f32_16x16x32_bf16 v[{4+4*j}:{7+4*j}], v[{vr}:{vr+3}], v[{B}:{B+3}], {c}")
    def masks():
        A("v_and_b32 v44, 7, v0")
        for v in range(4):
            A(f"""
            v_cmp_eq_u32 vcc, {2*v}, v44
            v_mov_b32 v45, 0xffff
            v_cmp_eq_u32 s[72:73], {2*v+1}, v44
            v_mov_b32 v46, 0xffff0000
            v_cndmask_b32 v{40+v}, 0, v45, vcc
            s_nop 0
            v_cndmask_b32 v{40+v}, v{40+v}, v46, s[72:73]
            """)
    QD=160; QA=224
    def qaddr():
        A(f"""
        s_mul_i32 s3, s50, 24576
        s_mul_i32 s72, s49, 1536
        s_add_u32 s3, s3, s72
        s_add_u32 s3, s3, {QP}
        v_lshl_add_u32 v44, v0, 4, s3
        v_and_b32 v45, 31, v0
        v_lshlrev_b32 v45, 4, v45
        v_add_u32 v45, s3, v45
        v_add_u32 v45, 1024, v45
        """)
        for jj in range(8):
            A(f"v_add_u32 v{QA+jj}, {jj*3072}, v44\nv_add_u32 v{QA+8+jj}, {jj*3072}, v45")
        if XF:
            A(f"s_lshl_b32 s3, s50, 7\ns_add_u32 s3, s3, {XC}\nv_and_b32 v44, 7, v0\nv_lshl_add_u32 v244, v44, 4, s3")
    XF=o.get("xfast")
    def qloads():
        if XF: A("buffer_load_dwordx4 v[240:243], v244, s[36:39], 0 offen sc1")
        for jj in range(8):
            A(f"buffer_load_dwordx4 v[{QD+8*jj}:{QD+3+8*jj}], v{QA+jj}, s[36:39], 0 offen sc1")
            A(f"buffer_load_dwordx4 v[{QD+4+8*jj}:{QD+7+8*jj}], v{QA+8+jj}, s[36:39], 0 offen sc1")
    def qcheck(oklab):
        A(f"v_xor_b32 v46, v{QD+1}, v62")
        if XF: A("v_bitop3_b32 v46, v46, v241, v62 bitop3:0xf6\nv_bitop3_b32 v46, v46, v243, v62 bitop3:0xf6")
        first=True
        for k in range(16):
            for d in (1,3):
                if first: first=False; continue
                A(f"v_bitop3_b32 v46, v46, v{QD+4*k+d}, v62 bitop3:0xf6")
        A(f"""
        v_cmp_ne_u32 vcc, 0, v46
        s_add_u32 s74, s74, 1
        s_nop 3
        s_cmp_eq_u64 vcc, 0
        s_cbranch_scc1 {oklab}
        """)
    def qfinish():
        for d in (0,2):
            for half in (0,4):
                for jj in range(1,8):
                    A(f"v_add_f32 v{QD+half+d}, v{QD+half+d}, v{QD+8*jj+half+d}")
        A(f"""
        v_cvt_pk_bf16_f32 v46, v{QD}, v{QD+2}
        v_cvt_pk_bf16_f32 v47, v{QD+4}, v{QD+6}
        v_lshlrev_b32 v50, 2, v0
        v_and_b32 v51, 31, v0
        v_lshlrev_b32 v51, 2, v51
        ds_write_b32 v50, v46 offset:{Q_L}
        ds_write_b32 v51, v47 offset:{Q_L+256}
        """)
        if XF:
            A(f"""
            s_getreg_b32 s3, hwreg(HW_REG_XCC_ID)
            s_and_b32 s3, s3, 15
            v_cmp_ne_u32 vcc, s3, v240
            v_mov_b32 v47, 0
            s_nop 3
            s_cmp_eq_u64 vcc, 0
            s_cselect_b32 s3, 1, 0
            v_mov_b32 v46, s3
            ds_write_b32 v47, v46 offset:{XFLAG}
            """)
        A(f"""
        v_mov_b32 v46, 1
        v_mov_b32 v47, 0
        ds_write_b32 v47, v46 offset:{QFLAG}
        """)
    FD=160
    def faddr():
        A(f"""
        s_lshr_b32 s3, s2, 3
        s_mul_i32 s3, s3, 2560
        s_and_b32 s72, s2, 7
        s_lshl_b32 s72, s72, 5
        s_add_u32 s3, s3, s72
        s_add_u32 s3, s3, {FP}
        v_bfe_u32 v44, v0, 2, 1
        v_mul_u32_u24 v44, 61440, v44
        v_bfe_u32 v45, v0, 1, 1
        v_lshl_add_u32 v44, v45, 8, v44
        v_and_b32 v45, 1, v0
        v_lshl_add_u32 v44, v45, 4, v44
        v_add_u32 v{FD+20}, s3, v44
        """)
    def floads():
        for ks in range(5): A(f"buffer_load_dwordx4 v[{FD+4*ks}:{FD+4*ks+3}], v{FD+20}, s[36:39], 0 offen offset:{512*ks} sc1")
    def fcheck(oklab):
        for k in range(20): A(f"v_xor_b32 v{FD+k}, v{FD+k}, v63")
        A(f"v_or3_b32 v45, v{FD}, v{FD+1}, v{FD+2}")
        for k in range(3,19,2): A(f"v_or3_b32 v45, v45, v{FD+k}, v{FD+k+1}")
        A(f"v_or_b32 v45, v45, v{FD+19}")
        A(f"""
        v_and_b32 v45, 0x3ff, v45
        v_cmp_ne_u32 vcc, 0, v45
        s_add_u32 s74, s74, 1
        s_nop 3
        s_cmp_eq_u64 vcc, 0
        s_cbranch_scc1 {oklab}
        """)
    def ffinish():
        F=FD
        for d in range(4):
            for ks in range(1,5): A(f"v_add_f32 v{F+d}, v{F+d}, v{F+4*ks+d}")
        A(f"""
        v_cvt_pk_bf16_f32 v{F+4}, v{F}, v{F+1}
        v_cvt_pk_bf16_f32 v{F+5}, v{F+2}, v{F+3}
        v_lshlrev_b32 v{F}, 16, v{F+4}
        v_and_b32 v{F+1}, 0xffff0000, v{F+4}
        v_lshlrev_b32 v{F+2}, 16, v{F+5}
        v_and_b32 v{F+3}, 0xffff0000, v{F+5}
        """)
        E=F+8; U=F+12
        for d in range(4): A(f"v_mul_f32 v{E+d}, 0xbfb8aa3b, v{F+d}")
        for d in range(4): A(f"v_exp_f32 v{E+d}, v{E+d}")
        for d in range(4): A(f"v_mov_b32_dpp v{U+d}, v{F+d} row_ror:4 row_mask:0xf bank_mask:0xf")
        for d in range(4): A(f"v_add_f32 v{E+d}, 1.0, v{E+d}")
        for d in range(4): A(f"v_rcp_f32 v{E+d}, v{E+d}")
        nop(1)
        for d in range(4): A(f"v_mul_f32 v{E+d}, v{F+d}, v{E+d}")
        A(f"""
        v_cvt_pk_bf16_f32 v{F+4}, v{E}, v{E+1}
        v_cvt_pk_bf16_f32 v{F+5}, v{E+2}, v{E+3}
        v_lshlrev_b32 v{E}, 16, v{F+4}
        v_and_b32 v{E+1}, 0xffff0000, v{F+4}
        v_lshlrev_b32 v{E+2}, 16, v{F+5}
        v_and_b32 v{E+3}, 0xffff0000, v{F+5}
        """)
        for d in range(4): A(f"v_mul_f32 v{E+d}, v{E+d}, v{U+d}")
        A(f"""
        v_cvt_pk_bf16_f32 v{F+4}, v{E}, v{E+1}
        v_cvt_pk_bf16_f32 v{F+5}, v{E+2}, v{E+3}
        """)
    def fwrite():
        A(f"""
        v_bfe_u32 v44, v0, 1, 1
        v_lshlrev_b32 v44, 6, v44
        v_and_b32 v45, 1, v0
        v_lshl_add_u32 v44, v45, 3, v44
        s_mov_b64 exec, 0x0f
        ds_write_b64 v44, v[{FD+4}:{FD+5}] offset:{ACT_L+48}
        s_mov_b64 exec, -1
        """)
    def timeout(code, off):
        A(f"v_mov_b32 v46, {code}\nv_mov_b32 v47, {off}\nglobal_store_dword v47, v46, s[24:25]")

    if AD:
        A(f"v_mov_b32 v49, 0\ns_mov_b32 s10, 0\nv_lshlrev_b32 v48, 4, v0\nv_add_u32 v48, {PROG}, v48\ns_lshl_b32 s3, s2, 2\ns_add_u32 s3, s3, {PROG}\nv_mov_b32 v55, s3")
        flagtick(first=True)
    for g in range(NB1,16):
        stamp(f"Kt{g}")
        if g>NB1: flagtick()
        if g==PT+1:
            A("s_cmp_eq_u32 s48, 0\ns_cbranch_scc0 L_t_norm")
            stamp("qp0")
            qloads()
            for j in range(3): pload(g,j,KS,W-1+16+(1 if XF else 0))
            A("s_waitcnt vmcnt(3)\ns_mov_b32 s74, 0")
            qcheck("L_qok")
            A("L_qpoll:")
            A("s_sleep 2")
            qloads()
            A("s_waitcnt vmcnt(0)")
            qcheck("L_qok")
            A(f"s_cmp_lt_u32 s74, {POLL_LIMIT}\ns_cbranch_scc1 L_qpoll")
            timeout(0x101,0)
            A("L_qok:")
            stamp("qpok")
            if stamps: A("v_mov_b32 v3, s74")
            qfinish()
            A("s_branch L_t_join\nL_t_norm:")
            for j in range(3): pload(g,j,KS,W-1)
            A("L_t_join:")
            continue
        if g==XQ:
            stamp("kb2")
            ldsspin(QFLAG,1)
            A(f"""
            v_and_b32 v46, 7, v0
            v_lshlrev_b32 v46, 4, v46
            ds_read_b128 v[4:7], v46 offset:{Q_L}
            ds_read_b128 v[8:11], v46 offset:{Q_L+128}
            ds_read_b128 v[12:15], v46 offset:{Q_L+256}
            ds_read_b32 v46, v47 offset:{XFLAG}
            s_waitcnt lgkmcnt(0)
            v_readfirstlane_b32 s11, v46
            """)
            stamp("qready")
        pload(g,0,KS,W-1)
        cphooks(g)
        if g==NB1: qaddr()
        if g==NB1+1: masks()
        if g>=XQ:
            npt=16//(2*(16-XQ)) if XQ<16 else 0
            done=(g-XQ)*2
            kproc(done,done+1)
        pload(g,1,KS,W-1)
        pload(g,2,KS,W-1)
    kdone=(16-XQ)*2
    def maxp():
        A("v_max3_f32 v44, v16, v17, v18")
        for k in range(19,31,2): A(f"v_max3_f32 v44, v44, v{k}, v{k+1}")
        A("v_max_f32 v44, v44, v31")
        allreduce("v_max_f32",44,45,dppsteps=("row_ror:8",))
        A(f"""
        v_mov_b32 v61, v44
        v_mov_b32 v45, 0
        v_mov_b32 v46, 1
        s_mov_b64 exec, 1
        ds_max_f32 v45, v44 offset:{MMAX}
        ds_add_u32 v45, v46 offset:{CNT}
        s_mov_b64 exec, -1
        s_mov_b32 s72, {LOG2E:#x}
        v_mul_f32 v45, s72, v61
        """)
        for g in range(16): A(f"v_fma_f32 v{16+g}, v{16+g}, s72, -v45")
        for g in range(16): A(f"v_exp_f32 v{16+g}, v{16+g}")
    def lp():
        A("v_add_f32 v60, v16, v17")
        for g in range(2,16): A(f"v_add_f32 v60, v60, v{16+g}")
        for g in range(16): A(f"v_cvt_pk_bf16_f32 v{16+g}, v{16+g}, v{16+g}")
        allreduce("v_add_f32",60,47,dppsteps=("row_ror:8",))
    def alpha():
        ldsspin(CNT,8)
        A(f"""
        ds_read_b32 v44, v47 offset:{MMAX}
        s_waitcnt lgkmcnt(0)
        v_sub_f32 v59, v61, v44
        v_mul_f32 v59, {LOG2E:#x}, v59
        v_exp_f32 v59, v59
        v_mov_b32 v61, v44
        """)
    D4=o.get("dma4",False)
    def dmaprep():
        if D4: A("s_and_b32 s73, s48, 3")
        else: A("s_lshr_b32 s73, s48, 1")
        A(f"""
        s_cmp_eq_u32 s73, 3
        s_cselect_b32 s40, s20, s12
        s_cselect_b32 s41, s21, s13
        s_mov_b32 s42, 7864320
        s_cselect_b32 s42, 1966080, s42
        s_cselect_b64 s[74:75], -1, 0
        s_and_b32 s41, s41, 0xffff
        s_mul_i32 s14, s50, 245760
        s_min_u32 s3, s2, 191
        s_mul_i32 s3, s3, 10240
        s_cmp_eq_u32 s73, 3
        s_cselect_b32 s14, s3, s14
        """)
        if D4: A(f"s_lshl_b32 s15, s73, 10\ns_add_u32 s15, s15, {WO_L}")
        else: A(f"""
        s_and_b32 s3, s48, 1
        s_mul_i32 s72, s3, 640
        s_add_u32 s14, s14, s72
        s_mul_i32 s15, s3, 20480
        s_lshl_b32 s3, s73, 10
        s_add_u32 s15, s15, s3
        s_add_u32 s15, s15, {WO_L}
        """)
        A(f"""
        s_mul_i32 s3, s51, 24
        s_lshl_b32 s72, s73, 3
        s_add_u32 s3, s3, s72
        v_lshrrev_b32 v45, 3, v0
        v_add_u32 v46, s3, v45
        v_and_b32 v44, 0xe0, v46
        v_and_b32 v47, 3, v46
        v_lshl_add_u32 v44, v47, 3, v44
        v_bfe_u32 v47, v46, 2, 3
        v_add_u32 v44, v44, v47
        v_cndmask_b32 v44, v44, v45, s[74:75]
        v_mul_u32_u24 v45, 1280, v44
        s_and_b32 s3, s73, 1
        s_lshl_b32 s3, s3, 1
        v_bfe_u32 v44, v0, 4, 1
        v_or_b32 v44, s3, v44
        v_lshlrev_b32 v44, 1, v44
        v_and_b32 v46, 7, v0
        v_xor_b32 v44, v44, v46
        v_lshl_add_u32 v2, v44, 4, v45
        """)
    def dmaissue():
        l=A.lab("L_nd")
        if D4: A(f"s_cmp_ge_u32 s48, 4\ns_cbranch_scc1 {l}")
        A("s_mov_b32 m0, s15")
        for t in range(10 if D4 else 5):
            if t>0: A("s_add_u32 m0, m0, 4096\ns_add_u32 s14, s14, 128")
            else: A("s_nop 0")
            A(f"buffer_load_dwordx4 v2, s[40:43], s14 offen {nt} lds")
        if D4: A(f"{l}:")
    def partaddr():
        A(f"""
        v_bfe_u32 v44, v0, 4, 1
        v_and_b32 v45, 7, v0
        v_lshl_add_u32 v44, v44, 3, v45
        v_lshlrev_b32 v44, 4, v44
        v_bfe_u32 v45, v0, 5, 1
        v_mul_u32_u24 v46, {PART_P}, v45
        s_mul_i32 s3, s48, {PART_W}
        v_add3_u32 v56, v44, v46, s3
        v_bfe_u32 v44, v0, 3, 1
        v_cmp_eq_u32 s[76:77], v44, v45
        v_mov_b32 v57, s3
        """)
    def yprep():
        A(f"""
        v_lshrrev_b32 v45, 4, v0
        v_bfe_u32 v46, v0, 2, 2
        v_and_b32 v47, 3, v0
        v_lshl_add_u32 v48, v45, 3, v46
        v_lshlrev_b32 v48, 7, v48
        v_lshl_add_u32 v48, v47, 3, v48
        v_bfe_u32 v49, v0, 3, 1
        v_bfe_u32 v50, v0, 4, 1
        v_lshl_or_b32 v49, v50, 1, v49
        s_mul_i32 s72, s48, 5
        """)
        for tt in range(5):
            A(f"""
            s_add_u32 s3, s72, {tt}
            s_and_b32 s73, s3, 3
            s_lshr_b32 s3, s3, 2
            s_lshl_b32 s3, s3, 12
            v_xor_b32 v50, s73, v49
            v_lshl_add_u32 v50, v50, 5, v48
            v_add_u32 v{80+tt}, s3, v50
            """)
        A(f"""
        v_and_b32 v46, 1, v0
        v_lshlrev_b32 v85, 6, v46
        v_lshl_add_u32 v85, v45, 4, v85
        s_mul_i32 s3, s48, 163840
        s_lshl_b32 s72, s2, 7
        s_add_u32 s3, s3, s72
        s_add_u32 s3, s3, {YP}
        v_lshlrev_b32 v86, 6, v46
        v_lshl_add_u32 v86, v45, 4, v86
        v_bfe_u32 v47, v0, 1, 3
        v_lshl_add_u32 v86, v47, 15, v86
        v_add_u32 v86, s3, v86
        v_cmp_eq_u32 s[4:5], 1, v47
        v_cmp_eq_u32 s[6:7], 2, v47
        v_cmp_eq_u32 s[8:9], 3, v47
        v_cmp_eq_u32 s[12:13], 4, v47
        """)
        if o.get("yperm",True):
            A(f"""
            v_and_b32 v46, 3, v0
            v_lshlrev_b32 v94, 4, v46
            v_lshrrev_b32 v47, 3, v0
            v_min_u32 v47, 4, v47
            v_lshl_add_u32 v94, v47, 1, v94
            v_bfe_u32 v46, v0, 2, 1
            v_add_lshl_u32 v94, v94, v46, 2
            v_and_b32 v46, 7, v0
            v_lshlrev_b32 v46, 4, v46
            v_lshl_add_u32 v86, v47, 15, v46
            s_mul_i32 s3, s48, 163840
            s_lshl_b32 s72, s2, 7
            s_add_u32 s3, s3, s72
            s_add_u32 s3, s3, {YP}
            v_add_u32 v86, s3, v86
            """)
        A(f"""
        v_and_b32 v46, 7, v0
        v_lshrrev_b32 v47, 3, v0
        v_mul_u32_u24 v47, 6, v47
        v_add_lshl_u32 v47, v47, v46, 4
        v_cmp_lt_u32 s[78:79], 5, v46
        v_add_u32 v88, {PART_P}, v47
        v_mov_b32 v46, 768
        s_nop 0
        v_cndmask_b32 v87, v47, v46, s[78:79]
        v_cndmask_b32 v88, v88, v46, s[78:79]
        s_lshl_b32 s3, s50, 13
        s_lshl_b32 s72, s51, 7
        s_add_u32 s72, s72, s3
        s_add_u32 s72, s72, {OP}
        v_lshrrev_b32 v45, 3, v0
        v_lshlrev_b32 v45, 10, v45
        v_and_b32 v46, 7, v0
        v_lshl_add_u32 v45, v46, 4, v45
        v_add_u32 v92, s72, v45
        s_lshl_b32 s72, s51, 10
        s_add_u32 s72, s72, s3
        s_add_u32 s72, s72, {OP}
        v_lshl_add_u32 v93, v0, 4, s72
        s_lshl_b32 s3, s51, 3
        s_lshl_b64 s[16:17], 0xff, s3
        """)

    A("L_codewarm_from:")
    kp=kdone
    vp=0
    pt=None
    FT=o.get("ftick",6)
    XV=o.get("xv",99); W2=o.get("W2",W)
    W0=W
    for i in range(16):
        W = W2 if i>=XV else W0
        Wcur[0]=W
        stamp(f"Vt{i}")
        flagtick()
        def work(i=i):
            nonlocal kp,vp,pt
            if kp<16:
                kproc(kp,kp+1); kp+=2
                if kp==16: pt=i+1
            elif i==pt:
                stamp("Kdone")
                maxp()
        def work2(i=i):
            nonlocal vp
            if pt is not None and i==pt:
                lp()
            elif pt is not None and i>pt:
                n=0
                while 3*vp+2 <= 3*i+1-max(W+max(PAT),WF or 0) and n<2:
                    vproc(vp); vp+=1; n+=1
            if i==9: partaddr()
            if i==10: alpha()
            if i==11: dmaprep()
            if i==13: yprep()
        if i==FT:
            A("s_cmp_eq_u32 s48, 1\ns_cbranch_scc0 L_f_norm")
            A("s_cmp_ge_u32 s2, 192\ns_cbranch_scc1 L_f_zero")
            faddr(); floads()
            sv=(kp,vp,pt)
            pload(i,0,VS,W-1+5); work(); pload(i,1,VS,W-1+5); work2(); pload(i,2,VS,W-1+5)
            A("s_waitcnt vmcnt(3)\ns_mov_b32 s74, 0")
            fcheck("L_fok")
            A("L_fpoll:\ns_sleep 2")
            floads()
            A("s_waitcnt vmcnt(0)")
            fcheck("L_fok")
            A(f"s_cmp_lt_u32 s74, {POLL_LIMIT}\ns_cbranch_scc1 L_fpoll")
            timeout(0x102,4)
            A("L_fok:")
            ffinish(); fwrite()
            A("s_branch L_f_join\nL_f_zero:")
            A(f"v_mov_b32 v{FD+4}, 0\nv_mov_b32 v{FD+5}, 0")
            fwrite()
            A("L_f_norm:")
            kp,vp,pt=sv
            pload(i,0,VS,W-1); work(); pload(i,1,VS,W-1); work2(); pload(i,2,VS,W-1)
            A("L_f_join:")
            continue
        if o.get("heavyfirst") and pt is not None and i==pt:
            pload(i,0,VS,W-1); pload(i,1,VS,W); pload(i,2,VS,W+1); work(); work2()
            continue
        pload(i,0,VS,W-1); cphooks(16+i); work(); pload(i,1,VS,W-1); work2(); pload(i,2,VS,W-1)
    stamp("Vissued")
    DM=o.get("dma","pre")
    if DM=="pre": dmaissue()
    stamp("dmaiss")
    while vp<16:
        vproc(vp, wait=((10 if D4 else 5) if DM=='pre' else 0)+3*(15-vp)); vp+=1
    A("v_mul_f32 v60, v60, v59\nv_mul_f32 v60, 0.5, v60\nv_mov_b32 v58, v59")
    if DM=="V15": dmaissue()
    else: nop(6)
    for r in range(4,16,2): A(f"v_pk_mul_f32 v[{r}:{r+1}], v[{r}:{r+1}], v[58:59]")
    A("s_mov_b64 exec, s[76:77]")
    for j in range(3):
        A(f"ds_write_b128 v56, v[{4+4*j}:{7+4*j}] offset:{PART_L+256*j}")
    A(f"""
    s_mov_b64 exec, 1
    ds_write_b32 v57, v60 offset:{PART_L+772}
    s_mov_b64 exec, -1
    """)
    stamp("dsadd")
    if DM=="pre": A("s_waitcnt vmcnt(0) lgkmcnt(0)\ns_barrier")
    else: A("s_waitcnt lgkmcnt(0)\ns_barrier")
    stamp("barA")
    def aread():
        for tt in range(5):
            A(f"ds_read_b64_tr_b16 v[{160+4*tt}:{161+4*tt}], v{80+tt} offset:{WO_L}")
            A(f"ds_read_b64_tr_b16 v[{162+4*tt}:{163+4*tt}], v{80+tt} offset:{WO_L+512}")
    CNTD=FIN_L+84
    def dmasync():
        A(f"""
        s_waitcnt vmcnt(0)
        v_mov_b32 v47, 0
        v_mov_b32 v46, 1
        s_mov_b64 exec, 1
        ds_add_u32 v47, v46 offset:{CNTD}
        s_mov_b64 exec, -1
        """)
    A("s_cmp_eq_u32 s48, 4\ns_cbranch_scc1 L_pub")
    if DM=="A":
        A("s_cmp_ge_u32 s48, 4\ns_cbranch_scc1 L_nohop1")
        nop(o.get("dmadelay",24))
        dmaissue()
    if DM=="pre": aread()
    A("s_branch L_nohop1\nL_pub:")
    A("s_andn2_b64 exec, exec, s[16:17]\nbuffer_load_dwordx4 v[52:55], v93, s[36:39], 0 offen sc1\ns_mov_b64 exec, -1")
    R=96
    def rd(k):
        w_,par=k%8,k//8
        A(f"ds_read_b128 v[{R+4*k}:{R+4*k+3}], v{87 if par==0 else 88} offset:{PART_L+w_*PART_W}")
    def pkadd(d,a):
        A(f"v_pk_add_f32 v[{d}:{d+1}], v[{d}:{d+1}], v[{a}:{a+1}]")
        A(f"v_pk_add_f32 v[{d+2}:{d+3}], v[{d+2}:{d+3}], v[{a+2}:{a+3}]")
    for k in range(13): rd(k)
    A("s_mov_b32 s74, 0\ns_mov_b32 s76, 0xff00ff00\ns_mov_b32 s77, 0xff00ff00\ns_waitcnt lgkmcnt(5)")
    rd(13); rd(14); rd(15)
    for k in (1,3,5,7): pkadd(R+4*(k-1), R+4*k)
    pkadd(R,R+8); pkadd(R+16,R+24); pkadd(R,R+16)
    A("s_waitcnt lgkmcnt(0)")
    for k in (9,11,13,15): pkadd(R+4*(k-1), R+4*k)
    pkadd(R+32,R+40); pkadd(R+48,R+56); pkadd(R,R+32); pkadd(R,R+48)
    A(f"v_cndmask_b32 v{R}, v{R}, v61, s[78:79]")
    for k in range(4): A(f"v_bfi_b32 v{48+k}, s55, v{R+k}, v63")
    if XF:
        A("""
        s_cmp_eq_u32 s11, 1
        s_cbranch_scc1 L_pubfast
        buffer_store_dwordx4 v[48:51], v92, s[36:39], 0 offen sc1
        s_branch L_pubdone
        L_pubfast:
        buffer_store_dwordx4 v[48:51], v92, s[36:39], 0 offen
        L_pubdone:
        """)
    else:
        A("buffer_store_dwordx4 v[48:51], v92, s[36:39], 0 offen sc1")
    stamp("pub")
    if DM=="pre": aread()
    A("s_waitcnt vmcnt(1)")
    for k in range(4): A(f"v_cndmask_b32 v{52+k}, v{52+k}, v{48+k}, s[16:17]")
    A(f"""
    L_opoll:
    v_xor_b32 v52, v52, v63
    v_xor_b32 v53, v53, v63
    v_xor_b32 v54, v54, v63
    v_xor_b32 v55, v55, v63
    v_or3_b32 v47, v52, v53, v54
    v_or_b32 v47, v47, v55
    v_and_b32 v47, 0x3ff, v47
    v_cmp_ne_u32 vcc, 0, v47
    s_add_u32 s74, s74, 1
    s_nop 3
    s_cmp_eq_u64 vcc, 0
    s_cbranch_scc1 L_ook
    s_mov_b64 exec, vcc
    s_cmp_lt_u32 s74, {POLL_LIMIT}
    s_cbranch_scc0 L_oto
    buffer_load_dwordx4 v[52:55], v93, s[36:39], 0 offen sc1
    s_waitcnt vmcnt(0)
    s_branch L_opoll
    L_oto:
    s_mov_b64 exec, -1
    v_mov_b32 v56, 0x103
    v_mov_b32 v57, 8
    global_store_dword v57, v56, s[24:25]
    """)
    A(f"""
    L_ook:
    s_mov_b64 exec, -1
    {stampstr("opoll")}
    v_mov_b32_dpp v105, v52 row_newbcast:6 row_mask:0xf bank_mask:0xf
    v_mov_b32_dpp v106, v52 row_newbcast:14 row_mask:0xf bank_mask:0xf
    v_mov_b32_dpp v107, v53 row_newbcast:6 row_mask:0xf bank_mask:0xf
    v_mov_b32_dpp v108, v53 row_newbcast:14 row_mask:0xf bank_mask:0xf
    v_cndmask_b32 v105, v105, v106, s[76:77]
    v_cndmask_b32 v106, v107, v108, s[76:77]
    v_mov_b32 v107, v105
    """)
    allreduce("v_max_f32",107,108,dppsteps=("row_ror:8",),p32=False)
    A(f"""
    v_sub_f32 v105, v105, v107
    v_mul_f32 v105, {LOG2E:#x}, v105
    v_exp_f32 v105, v105
    s_nop 0
    v_mul_f32 v106, v106, v105
    v_mul_f32 v52, v52, v105
    v_mul_f32 v53, v53, v105
    v_mul_f32 v54, v54, v105
    v_mul_f32 v55, v55, v105
    """)
    RR=(106,52,53,54,55)
    for r in RR: A(f"v_add_f32_dpp v{r}, v{r}, v{r} row_ror:8 row_mask:0xf bank_mask:0xf")
    TT=(109,110,111,112,113)
    for k,r in enumerate(RR): A(f"v_mov_b32 v{TT[k]}, v{r}")
    for k,r in enumerate(RR): A(f"v_permlane16_swap_b32 v{r}, v{TT[k]}")
    nop(1)
    for k,r in enumerate(RR): A(f"v_add_f32 v{r}, v{r}, v{TT[k]}")
    A(f"""
    v_rcp_f32 v106, v106
    v_lshrrev_b32 v109, 5, v0
    v_lshlrev_b32 v109, 6, v109
    v_and_b32 v110, 7, v0
    v_lshl_add_u32 v109, v110, 3, v109
    v_mul_f32 v52, v52, v106
    v_mul_f32 v53, v53, v106
    v_mul_f32 v54, v54, v106
    v_mul_f32 v55, v55, v106
    v_cvt_pk_bf16_f32 v52, v52, v53
    v_cvt_pk_bf16_f32 v53, v54, v55
    s_mov_b32 exec_lo, 0x3f3f3f3f
    s_mov_b32 exec_hi, 0x3f3f3f3f
    ds_write_b64 v109, v[52:53] offset:{ACT_L}
    s_mov_b64 exec, -1
    s_branch L_nohop1w
    L_nohop1:
    """)
    if DM in ("A","V15"): A("s_waitcnt vmcnt(0)")
    A("L_nohop1w:")
    if DM in ("A","V15"):
        A("s_waitcnt lgkmcnt(0)\ns_barrier")
        stamp("barB")
        aread()
    else:
        A("s_waitcnt lgkmcnt(0)\ns_barrier")
        stamp("barB")
    A(f"ds_read_b128 v[88:91], v85 offset:{ACT_L}")
    A("s_waitcnt lgkmcnt(0)")
    for tt in range(5):
        A(f"v_mfma_f32_16x16x32_bf16 v[{112+4*tt}:{115+4*tt}], v[{160+4*tt}:{163+4*tt}], v[88:91], 0")
    nop(5)
    MK={1:"s[4:5]",2:"s[6:7]",3:"s[8:9]",4:"s[12:13]"}
    for tt in range(1,5):
        for k in range(4): A(f"v_cndmask_b32 v{112+k}, v{112+k}, v{112+4*tt+k}, {MK[tt]}")
    YP8=o.get("yperm",True)
    if YP8:
        for k in range(4): A(f"ds_bpermute_b32 v{116+k}, v94, v{112+k}")
        A("s_waitcnt lgkmcnt(0)")
        for k in range(4): A(f"v_bfi_b32 v{112+k}, s55, v{116+k}, v63")
        A("s_mov_b32 exec_lo, -1\ns_mov_b32 exec_hi, 0xff")
    else:
        for k in range(4): A(f"v_bfi_b32 v{112+k}, s55, v{112+k}, v63")
        A("s_mov_b32 exec_lo, 0x03ff03ff\ns_mov_b32 exec_hi, 0x03ff03ff")
    A(f"buffer_store_dwordx4 v[112:115], v86, s[36:39], 0 offen {o.get('yst','sc1')}")
    A("s_mov_b64 exec, -1")
    stamp("ystored")
    if o.get("ncons",40)==160:
        NS=o.get("nsets",3); SL=o.get("ssleep",6)
        A(f"""
        s_cmp_ge_u32 s2, 160
        s_cbranch_scc1 L_fin
        s_lshr_b32 s3, s2, 2
        s_lshl_b32 s3, s3, 15
        s_and_b32 s72, s2, 3
        s_lshl_b32 s72, s72, 5
        s_add_u32 s3, s3, s72
        s_lshl_b32 s72, s48, 12
        s_add_u32 s3, s3, s72
        s_add_u32 s3, s3, {YP}
        v_lshrrev_b32 v44, 1, v0
        v_lshlrev_b32 v44, 7, v44
        v_and_b32 v46, 1, v0
        v_lshl_add_u32 v44, v46, 4, v44
        v_add_u32 v44, s3, v44
        s_lshr_b32 s3, s2, 2
        s_lshl_b32 s3, s3, 5
        s_and_b32 s72, s2, 1
        s_lshl_b32 s72, s72, 4
        s_add_u32 s3, s3, s72
        s_bfe_u32 s72, s2, 0x10001
        s_mul_i32 s72, s72, 1280
        s_add_u32 s3, s3, s72
        v_and_b32 v45, 7, v0
        v_lshl_add_u32 v45, v45, 1, s3
        buffer_load_ushort v60, v45, s[44:47], 0 offen
        s_mov_b32 s74, 0
        """)
        SET=[132+4*k for k in range(NS)]
        def yl(b): A(f"buffer_load_dwordx4 v[{b}:{b+3}], v44, s[36:39], 0 offen sc1")
        def ychk(b):
            for k in range(4): A(f"v_xor_b32 v{b+k}, v{b+k}, v63")
            A(f"""
            v_or3_b32 v47, v{b}, v{b+1}, v{b+2}
            v_or_b32 v47, v47, v{b+3}
            v_and_b32 v47, 0x3ff, v47
            v_cmp_ne_u32 vcc, 0, v47
            s_add_u32 s74, s74, 1
            s_nop 3
            s_andn2_b64 exec, exec, vcc
            """)
            for k in range(4): A(f"v_mov_b32 v{100+k}, v{b+k}")
            A("""
            s_cmp_eq_u64 vcc, 0
            s_cbranch_scc1 L_yok
            s_mov_b64 exec, vcc
            """)
        for k,b in enumerate(SET):
            if k>0 and SL: A(f"s_sleep {SL}")
            yl(b)
        A("L_ypoll:")
        for b in SET:
            A(f"s_waitcnt vmcnt({NS-1})"); ychk(b); yl(b)
        A(f"""
        s_cmp_lt_u32 s74, {POLL_LIMIT}
        s_cbranch_scc1 L_ypoll
        s_mov_b64 exec, -1
        v_mov_b32 v56, 0x104
        v_mov_b32 v57, 12
        global_store_dword v57, v56, s[24:25]
        L_yok:
        s_mov_b64 exec, -1
        {stampstr("ypoll")}
        s_nop 0
        """)
        for pat in ("quad_perm:[2,3,0,1]","row_ror:4","row_ror:8"):
            for k in range(4): A(f"v_add_f32_dpp v{100+k}, v{100+k}, v{100+k} {pat} row_mask:0xf bank_mask:0xf")
        A(f"""
        s_lshl_b32 s3, s48, 5
        v_and_b32 v46, 1, v0
        v_lshlrev_b32 v46, 4, v46
        v_permlane16_swap_b32 v100, v101
        v_permlane16_swap_b32 v102, v103
        v_lshrrev_b32 v47, 4, v0
        v_add_f32 v100, v100, v101
        v_add_f32 v102, v102, v103
        v_lshl_add_u32 v46, v47, 2, v46
        v_add_u32 v46, s3, v46
        v_permlane32_swap_b32 v100, v102
        s_nop 1
        v_add_f32 v100, v100, v102
        s_mov_b32 exec_lo, 0x00030003
        s_mov_b32 exec_hi, 0x00030003
        ds_write_b32 v46, v100 offset:{FINP_L}
        s_mov_b64 exec, -1
        s_waitcnt lgkmcnt(0)
        s_barrier
        {stampstr("barC")}
        s_cmp_eq_u32 s48, 0
        s_cbranch_scc0 L_fin
        v_lshlrev_b32 v46, 2, v0
        ds_read_b32 v100, v46 offset:{FINP_L}
        s_mov_b32 s44, s22
        s_and_b32 s45, s23, 0xffff
        v_lshlrev_b32 v104, 16, v60
        s_waitcnt lgkmcnt(0)
        s_nop 0
        v_add_f32_dpp v100, v100, v100 row_ror:8 row_mask:0xf bank_mask:0xf
        s_nop 0
        v_mov_b32 v101, v100
        s_nop 1
        v_permlane16_swap_b32 v100, v101
        s_nop 0
        v_add_f32 v100, v100, v101
        v_mov_b32 v101, v100
        s_nop 1
        v_permlane32_swap_b32 v100, v101
        s_nop 0
        v_add_f32 v100, v100, v101
        v_add_f32 v100, v100, v104
        s_nop 1
        v_mov_b32_dpp v101, v100 quad_perm:[1,1,3,3] row_mask:0xf bank_mask:0xf
        v_and_b32 v45, -4, v45
        v_cvt_pk_bf16_f32 v100, v100, v101
        s_mov_b64 exec, 0x55
        buffer_store_dword v100, v45, s[44:47], 0 offen
        s_cmp_eq_u32 s2, 0
        s_cbranch_scc0 L_fin
        v_mov_b32 v46, s54
        v_mov_b32 v47, 0
        s_mov_b64 exec, 1
        buffer_store_dword v46, v47, s[36:39], 0 offen
        """)
    else:
        A(f"""
        s_cmp_ge_u32 s2, 40
        s_cbranch_scc1 L_fin
        s_lshl_b32 s3, s2, 15
        s_lshl_b32 s72, s48, 12
        s_add_u32 s3, s3, s72
        s_add_u32 s3, s3, {YP}
        v_lshl_add_u32 v44, v0, 4, s3
        s_lshl_b32 s72, s2, 5
        v_and_b32 v45, 7, v0
        v_lshl_add_u32 v45, v45, 2, s72
        v_bfe_u32 v46, v0, 3, 1
        v_mul_u32_u24 v46, 1280, v46
        v_add_u32 v45, v45, v46
        buffer_load_dword v60, v45, s[44:47], 0 offen
        s_mov_b32 s74, 0
        """)
        YS=o.get("ystag",10)
        def yl(b):
            for u in range(4): A(f"buffer_load_dwordx4 v[{b+4*u}:{b+4*u+3}], v44, s[36:39], 0 offen offset:{1024*u} sc1")
        def ychk(b, done):
            l=A.lab("L_yn")
            for k in range(16): A(f"v_xor_b32 v{b+k}, v{b+k}, v63")
            A(f"v_or3_b32 v47, v{b}, v{b+1}, v{b+2}")
            for k in range(3,15,2): A(f"v_or3_b32 v47, v47, v{b+k}, v{b+k+1}")
            A(f"v_or_b32 v47, v47, v{b+15}")
            A(f"""
            v_and_b32 v47, 0x3ff, v47
            v_cmp_ne_u32 vcc, 0, v47
            s_add_u32 s74, s74, 1
            s_nop 3
            s_andn2_b64 exec, exec, vcc
            s_cbranch_execz {l}
            """)
            for k in range(4): A(f"v_add_f32 v{b+k}, v{b+k}, v{b+4+k}")
            for k in range(4): A(f"v_add_f32 v{b+8+k}, v{b+8+k}, v{b+12+k}")
            for k in range(4): A(f"v_add_f32 v{100+k}, v{b+k}, v{b+8+k}")
            A(f"""
            {l}:
            s_cmp_eq_u64 vcc, 0
            s_cbranch_scc1 {done}
            s_mov_b64 exec, vcc
            """)
        SA,SB=132,148
        if YS:
            yl(SA)
            A(f"s_sleep {YS}")
            yl(SB)
            A("L_ypoll:\ns_waitcnt vmcnt(4)")
            ychk(SA,"L_yok"); yl(SA)
            A("s_waitcnt vmcnt(4)")
            ychk(SB,"L_yok"); yl(SB)
        else:
            A("L_ypoll:"); yl(SA); A("s_waitcnt vmcnt(0)"); ychk(SA,"L_yok")
        A(f"""
        s_cmp_lt_u32 s74, {POLL_LIMIT}
        s_cbranch_scc1 L_ypoll
        s_mov_b64 exec, -1
        v_mov_b32 v56, 0x104
        v_mov_b32 v57, 12
        global_store_dword v57, v56, s[24:25]
        L_yok:
        s_mov_b64 exec, -1
        {stampstr("ypoll")}
        """)
        if stamps: A("v_mov_b32 v3, s74")
        for k in range(4): A(f"v_add_f32_dpp v{100+k}, v{100+k}, v{100+k} row_ror:8 row_mask:0xf bank_mask:0xf")
        A("""
        s_lshl_b32 s3, s48, 7
        v_and_b32 v46, 7, v0
        v_lshlrev_b32 v46, 4, v46
        v_permlane16_swap_b32 v100, v101
        v_permlane16_swap_b32 v102, v103
        v_lshrrev_b32 v47, 4, v0
        v_add_f32 v100, v100, v101
        v_add_f32 v102, v102, v103
        v_lshl_add_u32 v46, v47, 2, v46
        v_add_u32 v46, s3, v46
        v_permlane32_swap_b32 v100, v102
        s_nop 1
        v_add_f32 v100, v100, v102
        """)
        A(f"""
        s_mov_b32 exec_lo, 0x00ff00ff
        s_mov_b32 exec_hi, 0x00ff00ff
        ds_write_b32 v46, v100 offset:{FINP_L}
        """)
        A(f"""
        s_mov_b64 exec, -1
        s_waitcnt lgkmcnt(0)
        s_barrier
        {stampstr("barC")}
        s_cmp_eq_u32 s48, 0
        s_cbranch_scc0 L_fin
        v_lshlrev_b32 v46, 3, v0
        ds_read_b64 v[100:101], v46 offset:{FINP_L}
        ds_read_b64 v[102:103], v46 offset:{FINP_L+512}
        s_mov_b32 s44, s22
        s_and_b32 s45, s23, 0xffff
        s_waitcnt lgkmcnt(0)
        v_add_f32 v100, v100, v102
        v_add_f32 v101, v101, v103
        """)
        for sw in ("v_permlane16_swap_b32","v_permlane32_swap_b32"):
            for k in range(2): A(f"v_mov_b32 v{104+k}, v{100+k}")
            nop(2)
            for k in range(2): A(f"{sw} v{100+k}, v{104+k}")
            nop(1)
            for k in range(2): A(f"v_add_f32 v{100+k}, v{100+k}, v{104+k}")
        A(f"""
        v_lshlrev_b32 v104, 16, v60
        v_and_b32 v105, 0xffff0000, v60
        v_add_f32 v100, v100, v104
        v_add_f32 v101, v101, v105
        v_cvt_pk_bf16_f32 v100, v100, v101
        s_mov_b64 exec, 0xffff
        buffer_store_dword v100, v45, s[44:47], 0 offen
        s_cmp_eq_u32 s2, 0
        s_cbranch_scc0 L_fin
        v_mov_b32 v46, s54
        v_mov_b32 v47, 0
        s_mov_b64 exec, 1
        buffer_store_dword v46, v47, s[36:39], 0 offen
        """)
    A(f"""
    L_fin:
    s_mov_b64 exec, -1
    """)
    if stamps:
        stamp("end"); A("s_waitcnt lgkmcnt(0)")
        A(f"""
        s_lshl_b32 s3, s2, 3
        s_add_u32 s3, s3, s48
        s_lshl_b32 s3, s3, 7
        s_add_u32 s3, s3, {STAMP}
        v_mov_b32 v44, s3
        s_getreg_b32 s72, hwreg(HW_REG_XCC_ID)
        s_mov_b64 exec, 1
        """)
        for k in range(0,22,2):
            A(f"v_mov_b32 v46, s{80+k}\nv_mov_b32 v47, s{81+k}\nglobal_store_dwordx2 v44, v[46:47], s[26:27] offset:{4*k}\ns_nop 1")
        A("v_mov_b32 v46, s72\nv_mov_b32 v47, v3\nglobal_store_dwordx2 v44, v[46:47], s[26:27] offset:88")
        A("s_getreg_b32 s72, hwreg(HW_REG_HW_ID)\ns_nop 1\nv_mov_b32 v46, s72\nv_mov_b32 v47, 0\nglobal_store_dwordx2 v44, v[46:47], s[26:27] offset:96")
    A("L_end:\ns_endpgm")
    A(f""".section .rodata,"a"
    .p2align 6
    .amdhsa_kernel {NAME}
    .amdhsa_next_free_vgpr 256
    .amdhsa_next_free_sgpr 102
    .amdhsa_accum_offset 256
    .amdhsa_group_segment_fixed_size 0
    .amdhsa_kernarg_size 96
    .amdhsa_user_sgpr_count 2
    .amdhsa_user_sgpr_kernarg_segment_ptr 1
    .amdhsa_system_sgpr_workgroup_id_x 1
    .amdhsa_float_denorm_mode_32 3
    .end_amdhsa_kernel""")
    open(fn,"w").write("\n".join(A.L)+"\n")

if __name__=="__main__":
    exec(sys.argv[1] if len(sys.argv)>1 else 'gen("k1.s"); gen("k1s.s", stamps=True)')
```

```python
import sys
NAME="parallel_sum__mha_block_cached__swiglu_ffn__decode_kernel"

Q_L=0; FINP_L=512; ACT_L=1536; FIN_L=1664; XN_L=2048; WQ_L=4608; FF_L=35328; WO_L=51712
PART_L=WQ_L; PART_W=1792; PART_P=896
QFLAG=FIN_L+64; CNT=FIN_L+68; MMAX=FIN_L+72; XFLAG=FIN_L+80
LDS_SIZE=WO_L+40960
QP=0x1000; FP=0xC2000; OP=0xE0000; YP=0x120000; PROG=0x260000; XC=0x261000; WS_USED=0x262000
STAMP=0x10000000; DBG=0x11000000
LOG2E=0x3fb8aa3b
SCALE=0x3d93cd3a
POLL_LIMIT=200000

HEADER = """; Kernarg layout for this problem (96 bytes, ptrs only, base s[0:1]):
;
"""

class G:
    def __init__(s): s.L=[]; s.n=0
    def __call__(s,t):
        for x in t.strip("\n").split("\n"):
            x=x.strip()
            if x: s.L.append(x)
    def lab(s,p="L"):
        s.n+=1; return f"{p}_{s.n}"

def gen(fn, stamps=False, dbg=False, nt="nt", opts=None):
    o=dict(opts or {})
    A=G()
    if not stamps:
        for l in HEADER.strip("\n").split("\n"): A.L.append(l)
    A(f"; @launch grid=(256,1,1) block=(512,1,1) lds={LDS_SIZE}")
    hdr_mark=len(A.L)
    if stamps: A("; stamps: "+",".join(o.get("slist",["start","bar1","p0done","kb2","qready","Kdone","Vstart","barA","barB","ystored","end"])))
    A('.amdgcn_target "amdgcn-amd-amdhsa--gfx950"')
    A(f".text\n.globl {NAME}\n.p2align 8\n.type {NAME},@function\n{NAME}:")
    nst=[0]
    slist=o.get("slist",["start","bar1","p0done","kb2","qready","Kdone","Vstart","barA","barB","ystored","end"])
    def stamp(nm):
        if stamps and nm in slist:
            i=slist.index(nm); A(f"s_memrealtime s[{80+2*i}:{81+2*i}]")
    def stampstr(nm):
        if stamps and nm in slist:
            i=slist.index(nm); return f"s_memrealtime s[{80+2*i}:{81+2*i}]"
        return ""
    def nop(n):
        while n>0:
            k=min(n,16); A(f"s_nop {k-1}"); n-=k
    stamp("start")
    A("""
    s_load_dwordx16 s[4:19], s[0:1], 0
    s_load_dwordx8 s[20:27], s[0:1], 64
    s_cmp_ge_u32 s2, 256
    s_cbranch_scc1 L_end
    s_setprio 3
    v_lshrrev_b32 v2, 6, v0
    v_and_b32 v0, 63, v0
    v_readfirstlane_b32 s48, v2
    """)
    mapping=o.get("map","lin"); IL=o.get("il",False)
    if mapping=="lin": A("s_mov_b32 s76, s2")
    elif mapping=="xcd":
        A("s_and_b32 s76, s2, 7\ns_lshr_b32 s3, s2, 6\ns_lshl_b32 s3, s3, 3\ns_add_u32 s76, s76, s3\ns_lshl_b32 s76, s76, 2\ns_lshr_b32 s3, s2, 3\ns_and_b32 s72, s3, 3\ns_add_u32 s76, s76, s72\ns_bfe_u32 s3, s2, 0x10005\ns_lshl_b32 s3, s3, 7\ns_add_u32 s76, s76, s3")
    elif mapping=="xcd2":
        A("s_and_b32 s76, s2, 7\ns_lshl_b32 s76, s76, 2\ns_lshr_b32 s3, s2, 6\ns_add_u32 s76, s76, s3\ns_lshl_b32 s76, s76, 2\ns_lshr_b32 s3, s2, 3\ns_and_b32 s72, s3, 3\ns_add_u32 s76, s76, s72\ns_bfe_u32 s3, s2, 0x10005\ns_lshl_b32 s3, s3, 7\ns_add_u32 s76, s76, s3")
    elif mapping=="xcd3":
        A("s_and_b32 s76, s2, 31\ns_lshl_b32 s76, s76, 2\ns_lshr_b32 s3, s2, 5\ns_and_b32 s72, s3, 3\ns_add_u32 s76, s76, s72\ns_lshr_b32 s3, s2, 7\ns_lshl_b32 s3, s3, 7\ns_add_u32 s76, s76, s3")
    elif mapping=="blk": A("s_and_b32 s76, s2, 7\ns_lshl_b32 s76, s76, 5\ns_lshr_b32 s3, s2, 3\ns_add_u32 s76, s76, s3")
    A("""
    s_lshr_b32 s49, s76, 7
    s_lshr_b32 s50, s76, 2
    s_and_b32 s50, s50, 31
    s_and_b32 s51, s76, 3
    s_lshl_b32 s3, s49, 2
    s_add_u32 s51, s51, s3
    """)
    GS=24576 if IL else 3072
    A(f"""
    s_mul_i32 s76, s76, 393216
    s_mul_i32 s77, s48, {3072 if IL else 49152}
    s_add_u32 s76, s76, s77
    v_lshrrev_b32 v2, 3, v0
    v_and_b32 v3, 7, v0
    v_mul_u32_u24 v1, 384, v2
    v_lshl_add_u32 v1, v3, 4, v1
    v_add_u32 v1, s76, v1
    """)
    A("""
    s_min_u32 s77, s2, 239
    s_mul_hi_u32 s78, s77, 0x33333334
    s_mul_i32 s79, s78, 5
    s_sub_u32 s79, s77, s79
    """)
    A(f"""
    s_mul_i32 s3, s48, 1280
    v_lshl_add_u32 v44, v0, 2, s3
    s_mov_b32 s30, 100663296
    s_mov_b32 s31, 0x20000
    s_mov_b32 s34, 100663296
    s_mov_b32 s35, 0x20000
    s_mov_b32 s38, {WS_USED}
    s_mov_b32 s39, 0x20000
    s_mov_b32 s46, 2560
    s_mov_b32 s47, 0x20000
    s_mov_b32 s43, 0x20000
    s_cmp_ge_u32 s48, 5
    s_cbranch_scc1 L_preF
    """)
    for r in range(3):
        A(f"""
        v_add_u32 v45, {64*r}, v0
        v_mul_u32_u24 v46, 2731, v45
        v_lshrrev_b32 v46, 16, v46
        v_mul_u32_u24 v47, 24, v46
        v_sub_u32 v45, v45, v47
        v_mul_u32_u24 v46, 12288, v46
        v_lshl_add_u32 v{48+r}, v45, 4, v46
        """)
    A(f"""
    s_mul_i32 s72, s51, 983040
    s_mul_i32 s3, s50, 384
    s_add_u32 s72, s72, s3
    s_mul_i32 s3, s48, 196608
    s_add_u32 s72, s72, s3
    s_mul_i32 s3, s48, 6144
    s_add_u32 s3, s3, {WQ_L}
    s_mov_b32 m0, s3
    s_mov_b32 s42, 7864320
    s_branch L_preD
    L_preF:
    s_cmp_ge_u32 s78, 24
    s_cselect_b32 s3, 24, 0
    s_sub_u32 s3, s78, s3
    s_lshl_b32 s72, s3, 7
    s_mul_i32 s3, s79, 393216
    s_add_u32 s72, s72, s3
    s_sub_u32 s73, s48, 5
    s_mul_i32 s3, s73, 147456
    s_add_u32 s72, s72, s3
    s_mul_i32 s3, s73, 6144
    s_add_u32 s3, s3, {FF_L}
    s_mov_b32 m0, s3
    v_lshrrev_b32 v45, 3, v0
    v_mul_u32_u24 v45, 3072, v45
    v_and_b32 v46, 7, v0
    v_lshl_add_u32 v48, v46, 4, v45
    v_mov_b32 v49, v48
    v_mov_b32 v50, v48
    s_mov_b32 s42, 1966080
    L_preD:
    s_waitcnt lgkmcnt(0)
    """)
    stamp("ka")
    A("""
    s_load_dword s54, s[26:27], 0
    s_cmp_ge_u32 s48, 2
    s_cbranch_scc1 L_nox
    s_mov_b32 s44, s4
    s_and_b32 s45, s5, 0xffff
    """)
    for i in range(5): A(f"buffer_load_dword v{112+i}, v44, s[44:47], 0 offen offset:{256*i}")
    A("L_nox:")
    A(f"""
    s_cmp_ge_u32 s48, 5
    s_cbranch_scc1 L_dmaF
    s_mov_b32 s40, s10
    s_and_b32 s41, s11, 0xffff
    """)
    for t in range(6):
        if t==3: A("s_add_u32 s72, s72, 98304")
        if t>0: A("s_add_u32 m0, m0, 1024")
        A("s_nop 0")
        A(f"buffer_load_dwordx4 v{48+t%3}, s[40:43], s72 offen {nt} lds")
    A("s_branch L_dmaDone")
    A("L_dmaF:")
    A("""
    s_cmp_ge_u32 s78, 24
    s_cselect_b32 s40, s18, s16
    s_cselect_b32 s41, s19, s17
    s_and_b32 s41, s41, 0xffff
    s_cmp_ge_u32 s2, 240
    s_cbranch_scc1 L_dmaDone
    """)
    for t in range(6):
        if t==4:
            A("s_cmp_eq_u32 s48, 7\ns_cbranch_scc1 L_dmaDone")
        if t>0: A("s_add_u32 m0, m0, 1024\ns_add_u32 s72, s72, 24576")
        A("s_nop 0")
        A(f"buffer_load_dwordx4 v48, s[40:43], s72 offen {nt} lds")
    A("L_dmaDone:")
    A("""
    s_mov_b32 s28, s6
    s_and_b32 s29, s7, 0xffff
    s_mov_b32 s32, s8
    s_and_b32 s33, s9, 0xffff
    s_mov_b32 s36, s26
    s_and_b32 s37, s27, 0xffff
    s_mov_b32 s44, s4
    s_and_b32 s45, s5, 0xffff
    """)
    rot=o.get("rot","hash")
    if rot=="none":
        for g in range(16): A(f"s_mov_b32 s{56+g}, {g*GS}")
    else:
        A("s_nop 4")
        if rot=="hash":
            A("s_lshl_b32 s74, s2, 3\ns_add_u32 s74, s74, s48\ns_mul_i32 s74, s74, 0x9E3779B1\ns_lshr_b32 s74, s74, 20")
        elif isinstance(rot,tuple):
            a_,b_,c_=rot
            A(f"s_lshr_b32 s74, s2, 3\ns_mul_i32 s74, s74, {a_}\ns_mul_i32 s75, s48, {b_}\ns_add_u32 s74, s74, s75\ns_and_b32 s75, s2, 7\ns_mul_i32 s75, s75, {c_}\ns_add_u32 s74, s74, s75")
        elif rot=="wgw":
            A("s_lshr_b32 s74, s2, 3\ns_lshl_b32 s75, s48, 1\ns_add_u32 s74, s74, s75")
        for g in range(16): A(f"s_add_u32 s75, s74, {g}\ns_and_b32 s75, s75, 15\ns_mul_i32 s{56+g}, s75, {GS}")
    stamp("dma0")
    def kload(g,j,srd="s[28:31]"):
        r=64+4*(3*g+j)
        A(f"buffer_load_dwordx4 v[{r}:{r+3}], v1, {srd}, s{56+g} offen offset:{128*j} {nt}")
    NB1=o.get("nb1",2)
    B1W=o.get("b1w",0)
    if o.get("bar0",True) and not B1W: A("s_barrier")
    if not B1W:
        for g in range(NB1):
            for j in range(3): kload(g,j)
    stamp("b1")
    A(f"""
    s_cmp_eq_u32 s48, 2
    s_cbranch_scc0 L_noinit
    v_mov_b32 v46, 0xff800000
    v_cmp_eq_u32 vcc, 18, v0
    v_lshlrev_b32 v45, 2, v0
    s_nop 1
    v_cndmask_b32 v46, 0, v46, vcc
    ds_write_b32 v45, v46 offset:{FIN_L}
    L_noinit:
    """)
    def allreduce(op, v, t, dppsteps=("quad_perm:[1,0,3,2]","quad_perm:[2,3,0,1]","row_half_mirror","row_mirror"), p16=True, p32=True):
        for st in dppsteps:
            nop(2)
            A(f"{op}_dpp v{v}, v{v}, v{v} {st} row_mask:0xf bank_mask:0xf")
        if p16:
            A(f"v_mov_b32 v{t}, v{v}"); nop(2)
            A(f"v_permlane16_swap_b32 v{v}, v{t}"); nop(1)
            A(f"{op} v{v}, v{v}, v{t}")
        if p32:
            A(f"v_mov_b32 v{t}, v{v}"); nop(2)
            A(f"v_permlane32_swap_b32 v{v}, v{t}"); nop(1)
            A(f"{op} v{v}, v{v}, v{t}")
    A("""
    s_cmp_ge_u32 s48, 2
    s_cbranch_scc1 L_noln
    s_waitcnt vmcnt(@@)
    """.replace("@@",str(6 if B1W else 6+3*NB1)))
    X=120
    for i in range(5):
        A(f"v_lshlrev_b32 v{X+2*i}, 16, v{112+i}")
        A(f"v_and_b32 v{X+2*i+1}, 0xffff0000, v{112+i}")
    A(f"v_add_f32 v130, v{X}, v{X+1}")
    for k in range(2,10): A(f"v_add_f32 v130, v130, v{X+k}")
    allreduce("v_add_f32",130,131)
    A("v_mul_f32 v130, 0x3acccccd, v130")
    for k in range(10): A(f"v_sub_f32 v{132+k}, v{X+k}, v130")
    A("v_mul_f32 v142, v132, v132")
    for k in range(1,10): A(f"v_fmac_f32 v142, v{132+k}, v{132+k}")
    allreduce("v_add_f32",142,131)
    A("""
    v_mul_f32 v142, 0x3acccccd, v142
    v_cvt_pk_bf16_f32 v143, v130, v142
    v_lshlrev_b32 v130, 16, v143
    v_and_b32 v142, 0xffff0000, v143
    v_add_f32 v142, 0x3727c5ac, v142
    v_cvt_pk_bf16_f32 v142, v142, v142
    v_lshlrev_b32 v142, 16, v142
    v_sqrt_f32 v142, v142
    s_nop 0
    v_cvt_pk_bf16_f32 v142, v142, v142
    v_lshlrev_b32 v142, 16, v142
    v_rcp_f32 v143, v142
    """)
    for i in range(5):
        A(f"v_sub_f32 v{132+2*i}, v{X+2*i}, v130")
        A(f"v_sub_f32 v{133+2*i}, v{X+2*i+1}, v130")
        A(f"v_cvt_pk_bf16_f32 v{112+i}, v{132+2*i}, v{133+2*i}")
    for i in range(5):
        A(f"v_lshlrev_b32 v{132+2*i}, 16, v{112+i}")
        A(f"v_and_b32 v{133+2*i}, 0xffff0000, v{112+i}")
    for k in range(10):
        A(f"v_mul_f32 v{X+k}, v{132+k}, v143")
    for k in range(10):
        A(f"v_fma_f32 v{132+k}, -v{X+k}, v142, v{132+k}")
    for k in range(10):
        A(f"v_fmac_f32 v{X+k}, v{132+k}, v143")
    A(f"s_mul_i32 s3, s48, 1280\nv_lshl_add_u32 v44, v0, 2, s3")
    for i in range(5):
        A(f"v_cvt_pk_bf16_f32 v{112+i}, v{X+2*i}, v{X+2*i+1}")
    for i in range(5):
        A(f"ds_write_b32 v44, v{112+i} offset:{XN_L+256*i}")
    A("L_noln:")
    stamp("ln")
    if B1W:
        for g in range(NB1):
            for j in range(3):
                A(f"s_waitcnt vmcnt({B1W-1})"); kload(g,j)
    NW=0
    if o.get("warm"):
        NW=2
        A(f"""
        v_mov_b32 v44, 0
        s_cmp_eq_u32 s48, 2
        s_cbranch_scc0 L_wm3
        global_load_dword v240, v44, s[22:23]
        s_mul_i32 s3, s50, 245760
        s_mul_i32 s72, s51, 30720
        s_add_u32 s3, s3, s72
        v_mov_b32 v45, s3
        global_load_dword v241, v45, s[12:13]
        s_branch L_wmd
        L_wm3:
        s_cmp_eq_u32 s48, 3
        s_cbranch_scc0 L_wm4
        s_min_u32 s3, s2, 191
        s_mul_i32 s3, s3, 10240
        v_mov_b32 v46, s3
        global_load_dword v240, v46, s[20:21]
        buffer_load_dword v241, v1, s[32:35], 0 offen
        s_branch L_wmd
        L_wm4:
        s_cmp_eq_u32 s48, 4
        s_cbranch_scc0 L_wm5
        s_lshl_b32 s3, s50, 13
        s_lshl_b32 s72, s51, 10
        s_add_u32 s3, s3, s72
        s_add_u32 s3, s3, {OP}
        v_lshl_add_u32 v47, v0, 4, s3
        buffer_load_dword v240, v47, s[36:39], 0 offen sc1
        v_lshlrev_b32 v47, 15, v0
        v_min_u32 v47, {39*32768}, v47
        s_lshl_b32 s3, s2, 7
        s_add_u32 s3, s3, {YP}
        v_add_u32 v47, s3, v47
        buffer_load_dword v241, v47, s[36:39], 0 offen sc1
        s_branch L_wmd
        L_wm5:
        s_getpc_b64 s[72:73]
        L_pc0:
        s_add_u32 s72, s72, L_codewarm_from-L_pc0
        s_addc_u32 s73, s73, 0
        v_lshlrev_b32 v44, 7, v0
        v_min_u32 v44, L_end-L_codewarm_from, v44
        global_load_dword v240, v44, s[72:73]
        v_add_u32 v44, 64, v44
        v_min_u32 v44, L_end-L_codewarm_from, v44
        global_load_dword v241, v44, s[72:73]
        L_wmd:
        """)
    A(f"s_waitcnt vmcnt({3*NB1+NW}) lgkmcnt(0)")
    A("""
    s_add_u32 s3, s54, 1
    s_mul_i32 s53, s3, 0x9E3779B1
    s_bfe_u32 s3, s53, 0x90010
    s_add_u32 s3, s3, 16
    s_add_u32 s3, s3, s54
    s_and_b32 s52, s3, 0x3ff
    s_lshr_b32 s54, s54, 10
    s_add_u32 s54, s54, 1
    s_lshl_b32 s54, s54, 10
    s_or_b32 s54, s54, s52
    s_mov_b32 s55, 0xfffffc00
    v_mov_b32 v63, s52
    v_mov_b32 v62, s53
    s_barrier
    """)
    stamp("bar1")
    A("""
    s_cmp_eq_u32 s48, 0
    s_cbranch_scc1 L_p0done
    s_cmp_eq_u32 s48, 7
    s_cbranch_scc1 L_p0x
    """)
    A(f"""
    v_lshrrev_b32 v45, 4, v0
    v_bfe_u32 v46, v0, 2, 2
    v_and_b32 v47, 3, v0
    v_and_b32 v48, 1, v0
    v_lshl_add_u32 v49, v45, 3, v46
    v_mul_u32_u24 v52, 1280, v48
    s_cmp_ge_u32 s48, 5
    s_cbranch_scc1 L_ffn0c
    v_mul_u32_u24 v50, 384, v49
    v_lshl_add_u32 v50, v47, 3, v50
    v_lshl_add_u32 v51, v45, 2, v46
    v_mul_u32_u24 v51, 384, v51
    v_lshl_add_u32 v51, v47, 3, v51
    s_sub_u32 s73, s48, 1
    s_mul_i32 s3, s73, 96
    v_add_u32 v50, s3, v50
    v_add_u32 v51, s3, v51
    s_mul_i32 s3, s51, 160
    v_add_u32 v53, s3, v52
    v_lshl_add_u32 v54, v45, 3, v53
    v_lshl_add_u32 v53, v45, 4, v53
    """)
    T0=112
    A(f"""
    ds_read_b128 v[{T0}:{T0+3}], v53 offset:{XN_L}
    ds_read_b128 v[{T0+4}:{T0+7}], v53 offset:{XN_L+64}
    ds_read_b64 v[{T0+8}:{T0+9}], v54 offset:{XN_L+128}
    """)
    def qtile(off, Ab):
        A(f"""
        ds_read_b64_tr_b16 v[{Ab}:{Ab+1}], v50 offset:{WQ_L+off}
        ds_read_b64_tr_b16 v[{Ab+2}:{Ab+3}], v50 offset:{WQ_L+off+1536}
        ds_read_b64_tr_b16 v[{Ab+4}:{Ab+5}], v50 offset:{WQ_L+off+12288}
        ds_read_b64_tr_b16 v[{Ab+6}:{Ab+7}], v50 offset:{WQ_L+off+13824}
        ds_read_b64_tr_b16 v[{Ab+8}:{Ab+9}], v51 offset:{WQ_L+off+24576}
        """)
    def qmfma(D,Ab):
        A(f"""
        v_mfma_f32_16x16x32_bf16 v[{D}:{D+3}], v[{Ab}:{Ab+3}], v[{T0}:{T0+3}], 0
        v_mfma_f32_16x16x32_bf16 v[{D}:{D+3}], v[{Ab+4}:{Ab+7}], v[{T0+4}:{T0+7}], v[{D}:{D+3}]
        s_nop 5
        v_mfma_f32_16x16x16_bf16 v[{D}:{D+3}], v[{Ab+8}:{Ab+9}], v[{T0+8}:{T0+9}], v[{D}:{D+3}]
        """)
    A(f"""
    s_lshl_b32 s3, s50, 3
    s_add_u32 s3, s3, s51
    s_mul_i32 s3, s3, 3072
    s_mul_i32 s72, s73, 384
    s_add_u32 s3, s3, s72
    s_add_u32 s3, s3, {QP}
    v_mul_u32_u24 v55, 1536, v48
    v_lshl_add_u32 v55, v45, 5, v55
    v_add_u32 v55, s3, v55
    """)
    QFULL=o.get("qfull",True)
    SC=o.get("qsc","sc1")
    if QFULL:
        A("""
        v_bfe_u32 v56, v0, 1, 1
        v_lshl_add_u32 v55, v56, 4, v55
        v_cmp_eq_u32 s[74:75], 1, v56
        """)
    def qstore(D, extra, t):
        a=56 if t%2==0 else 32
        if QFULL:
            A(f"""
            v_cndmask_b32 v{a}, v{D}, v{D+2}, s[74:75]
            v_mov_b32 v{a+1}, v62
            v_cndmask_b32 v{a+2}, v{D+1}, v{D+3}, s[74:75]
            v_mov_b32 v{a+3}, v62
            buffer_store_dwordx4 v[{a}:{a+3}], v55, s[36:39], 0 offen offset:{extra} {SC}
            """)
            return
        A(f"""
        v_mov_b32 v{a}, v{D}
        v_mov_b32 v{a+1}, v62
        v_mov_b32 v{a+2}, v{D+1}
        v_mov_b32 v{a+3}, v62
        buffer_store_dwordx4 v[{a}:{a+3}], v55, s[36:39], 0 offen offset:{extra} {SC}
        v_mov_b32 v{40}, v{D+2}
        v_mov_b32 v{41}, v62
        v_mov_b32 v{42}, v{D+3}
        v_mov_b32 v{43}, v62
        buffer_store_dwordx4 v[40:43], v55, s[36:39], 0 offen offset:{extra+16} {SC}
        """)
    qtile(0,124); qtile(32,134)
    A("s_waitcnt lgkmcnt(5)")
    qmfma(160,124)
    qtile(64,144)
    A("s_waitcnt lgkmcnt(5)")
    qmfma(164,134)
    A("s_waitcnt lgkmcnt(0)")
    qmfma(168,144)
    if o.get("test_qdelay"):
        A("s_bitcmp1_b32 s2, 5\ns_cbranch_scc0 L_tq")
        for _ in range(o["test_qdelay"]): A("s_sleep 100")
        A("L_tq:")
    if QFULL: A("s_mov_b32 exec_lo, 0x000f000f\ns_mov_b32 exec_hi, 0x000f000f")
    else: A("s_mov_b32 exec_lo, 0x00030003\ns_mov_b32 exec_hi, 0x00030003")
    nop(2)
    qstore(160,0,0)
    nop(2)
    qstore(164,128,1)
    nop(2)
    qstore(168,256,0)
    A("s_mov_b64 exec, -1")
    A("s_branch L_p0done")
    A("L_ffn0c:\ns_cmp_ge_u32 s2, 240\ns_cbranch_scc1 L_p0done\nL_ffn0:")
    A(f"""
    v_lshlrev_b32 v50, 7, v49
    v_lshl_add_u32 v50, v47, 3, v50
    s_sub_u32 s73, s48, 5
    s_lshl_b32 s3, s73, 6
    v_add_u32 v50, s3, v50
    s_lshl_b32 s3, s79, 8
    v_add_u32 v53, s3, v52
    v_lshl_add_u32 v53, v45, 4, v53
    """)
    for s_ in range(4): A(f"ds_read_b128 v[{112+4*s_}:{115+4*s_}], v53 offset:{XN_L+64*s_}")
    def fft(tt):
        for s_ in range(4):
            A(f"ds_read_b64_tr_b16 v[{128+16*tt+4*s_}:{129+16*tt+4*s_}], v50 offset:{FF_L+4096*s_+32*tt}")
            A(f"ds_read_b64_tr_b16 v[{130+16*tt+4*s_}:{131+16*tt+4*s_}], v50 offset:{FF_L+4096*s_+512+32*tt}")
    def ffm(tt):
        for s_ in range(4):
            D=160+4*tt
            c = "0" if s_==0 else f"v[{D}:{D+3}]"
            A(f"v_mfma_f32_16x16x32_bf16 v[{D}:{D+3}], v[{128+16*tt+4*s_}:{131+16*tt+4*s_}], v[{112+4*s_}:{115+4*s_}], {c}")
    fft(0)
    A(f"""
    s_mul_i32 s3, s78, 5
    s_add_u32 s3, s3, s79
    s_lshl_b32 s3, s3, 9
    s_lshl_b32 s72, s73, 7
    s_add_u32 s3, s3, s72
    s_add_u32 s3, s3, {FP}
    v_lshlrev_b32 v60, 8, v48
    v_lshl_add_u32 v60, v45, 4, v60
    v_add_u32 v60, s3, v60
    s_waitcnt lgkmcnt(0)
    """)
    fft(1)
    ffm(0)
    A("s_waitcnt lgkmcnt(0)")
    ffm(1)
    if o.get("test_fdelay"):
        A("s_bitcmp1_b32 s2, 4\ns_cbranch_scc0 L_tf")
        for _ in range(o["test_fdelay"]): A("s_sleep 100")
        A("L_tf:")
    A("s_mov_b32 exec_lo, 0x00030003\ns_mov_b32 exec_hi, 0x00030003")
    nop(4)
    for k in range(4): A(f"v_bfi_b32 v{160+k}, s55, v{160+k}, v63")
    A("buffer_store_dwordx4 v[160:163], v60, s[36:39], 0 offen sc1")
    nop(2)
    for k in range(4): A(f"v_bfi_b32 v{164+k}, s55, v{164+k}, v63")
    A("buffer_store_dwordx4 v[164:167], v60, s[36:39], 0 offen offset:64 sc1")
    A("s_mov_b64 exec, -1")
    if o.get("xfast"):
        A(f"""
        s_branch L_p0done
        L_p0x:
        s_getreg_b32 s3, hwreg(HW_REG_XCC_ID)
        s_and_b32 s3, s3, 15
        v_mov_b32 v56, s3
        v_mov_b32 v57, v62
        v_mov_b32 v58, s3
        v_mov_b32 v59, v62
        s_lshl_b32 s3, s50, 3
        s_add_u32 s3, s3, s51
        s_lshl_b32 s3, s3, 4
        s_add_u32 s3, s3, {XC}
        v_mov_b32 v55, s3
        s_mov_b64 exec, 1
        buffer_store_dwordx4 v[56:59], v55, s[36:39], 0 offen sc1
        s_mov_b64 exec, -1
        """)
    else:
        A("L_p0x:")
    A("L_p0done:")
    stamp("p0done")
    if o.get("bar1b",True): A("s_barrier")
    W=o.get("W",3)
    DM=o.get("dma","pre")
    XQ=o.get("xq",12)
    PT=o.get("ptick",6)
    A("s_setprio 0")
    def ldsspin(addr, val, vt=46, va=47):
        l=A.lab("L_spin"); d=A.lab("L_spind")
        A(f"""
        v_mov_b32 v{va}, 0
        s_mov_b32 s74, 0
        {l}:
        ds_read_b32 v{vt}, v{va} offset:{addr}
        s_waitcnt lgkmcnt(0)
        v_readfirstlane_b32 s3, v{vt}
        s_add_u32 s74, s74, 1
        s_nop 2
        s_cmp_eq_u32 s3, {val}
        s_cbranch_scc1 {d}
        s_cmp_lt_u32 s74, {POLL_LIMIT*20}
        s_cbranch_scc0 {d}
        s_sleep 1
        s_branch {l}
        {d}:
        """)
    AD=o.get("adapt")
    WF=AD["fast"] if AD else None
    FLAG=FIN_L+76
    PAT=o.get("pat",(0,0,0))
    def pload(g,j,srd,cnt):
        if cnt==Wcur[0]-1: cnt+=PAT[j]
        if AD and cnt==Wcur[0]-1 and WF>Wcur[0]:
            l=A.lab("L_w")
            A(f"s_waitcnt vmcnt({WF-1})\ns_bitcmp1_b32 s10, 0\ns_cbranch_scc1 {l}\ns_waitcnt vmcnt({cnt})\n{l}:")
        elif AD and cnt>Wcur[0]-1 and WF>Wcur[0]:
            A(f"s_waitcnt vmcnt({cnt})")
        else:
            A(f"s_waitcnt vmcnt({cnt})")
        kload(g,j,srd)
    Wcur=[W]
    def flagtick(first=False):
        if not AD: return
        if not first:
            A("s_waitcnt lgkmcnt(0)\nv_readfirstlane_b32 s10, v58")
        A(f"ds_read_b32 v58, v49 offset:{FLAG}")
    def cp_issue(c):
        l=A.lab("L_cp")
        A(f"""
        s_cmp_eq_u32 s48, 7
        s_cbranch_scc0 {l}
        s_add_u32 s3, s53, {c+1}
        v_mov_b32 v54, s3
        s_mov_b64 exec, 1
        buffer_store_dword v54, v55, s[36:39], 0 offen sc1
        s_mov_b64 exec, -1
        buffer_load_dwordx4 v[50:53], v48, s[36:39], 0 offen sc1
        {l}:
        """)
    def cp_use(c):
        l=A.lab("L_cu")
        A(f"""
        s_cmp_eq_u32 s48, 7
        s_cbranch_scc0 {l}
        s_add_u32 s3, s53, {c+1}
        v_subrev_u32 v50, s3, v50
        v_subrev_u32 v51, s3, v51
        v_subrev_u32 v52, s3, v52
        v_subrev_u32 v53, s3, v53
        v_cmp_gt_u32 s[72:73], 32, v50
        v_cmp_gt_u32 s[74:75], 32, v51
        v_cmp_gt_u32 s[18:19], 32, v52
        v_cmp_gt_u32 s[16:17], 32, v53
        s_nop 3
        s_bcnt1_i32_b64 s3, s[72:73]
        s_bcnt1_i32_b64 s72, s[74:75]
        s_add_u32 s3, s3, s72
        s_bcnt1_i32_b64 s72, s[18:19]
        s_add_u32 s3, s3, s72
        s_bcnt1_i32_b64 s72, s[16:17]
        s_add_u32 s3, s3, s72
        s_cmp_ge_u32 s3, {AD["th"]}
        s_cselect_b32 s3, 1, 0
        v_mov_b32 v54, s3
        s_mov_b64 exec, 1
        ds_write_b32 v49, v54 offset:{FLAG}
        s_mov_b64 exec, -1
        {l}:
        """)
    def cphooks(T):
        if not AD: return
        if T in AD["cps"]: cp_issue(AD["cps"].index(T))
        if T-2 in AD["cps"]: cp_use(AD["cps"].index(T-2))
    KS="s[28:31]"; VS="s[32:35]"
    def kproc(a,b):
        for j in range(3):
            for v in range(4):
                for g in (a,b):
                    kr=64+4*(3*g+j)+v
                    c = "0" if (j==0 and v==0) else f"v{16+g}"
                    A(f"v_dot2_f32_bf16 v{16+g}, v{kr}, v{4+4*j+v}, {c}")
        A("s_nop 1")
        for k,pat in enumerate(("quad_perm:[1,0,3,2]","quad_perm:[2,3,0,1]","row_half_mirror")):
            for g in (a,b):
                A(f"v_add_f32_dpp v{16+g}, v{16+g}, v{16+g} {pat} row_mask:0xf bank_mask:0xf")
            if k<2: A("s_nop 0")
        A(f"""
        v_cvt_pk_bf16_f32 v44, v{16+a}, v{16+b}
        v_lshlrev_b32 v45, 16, v44
        v_and_b32 v46, 0xffff0000, v44
        v_mul_f32 v45, {SCALE:#x}, v45
        v_mul_f32 v46, {SCALE:#x}, v46
        v_cvt_pk_bf16_f32 v44, v45, v46
        v_lshlrev_b32 v{16+a}, 16, v44
        v_and_b32 v{16+b}, 0xffff0000, v44
        """)
    def vproc(g, wait=None):
        B=32+4*(g&1)
        for v in range(4): A(f"v_and_b32 v{B+v}, v{16+g}, v{40+v}")
        if wait is not None:
            A(f"s_waitcnt vmcnt({wait})")
            if g==15: stamp("V15")
            nop(1)
        else: nop(2)
        for j in range(3):
            vr=64+4*(3*g+j)
            c = "0" if g==0 else f"v[{4+4*j}:{7+4*j}]"
            A(f"v_mfma_f32_16x16x32_bf16 v[{4+4*j}:{7+4*j}], v[{vr}:{vr+3}], v[{B}:{B+3}], {c}")
    def masks():
        A("v_and_b32 v44, 7, v0")
        for v in range(4):
            A(f"""
            v_cmp_eq_u32 vcc, {2*v}, v44
            v_mov_b32 v45, 0xffff
            v_cmp_eq_u32 s[72:73], {2*v+1}, v44
            v_mov_b32 v46, 0xffff0000
            v_cndmask_b32 v{40+v}, 0, v45, vcc
            s_nop 0
            v_cndmask_b32 v{40+v}, v{40+v}, v46, s[72:73]
            """)
    QD=160; QA=224
    def qaddr():
        A(f"""
        s_mul_i32 s3, s50, 24576
        s_mul_i32 s72, s49, 1536
        s_add_u32 s3, s3, s72
        s_add_u32 s3, s3, {QP}
        v_lshl_add_u32 v44, v0, 4, s3
        v_and_b32 v45, 31, v0
        v_lshlrev_b32 v45, 4, v45
        v_add_u32 v45, s3, v45
        v_add_u32 v45, 1024, v45
        """)
        for jj in range(8):
            A(f"v_add_u32 v{QA+jj}, {jj*3072}, v44\nv_add_u32 v{QA+8+jj}, {jj*3072}, v45")
        if XF:
            A(f"s_lshl_b32 s3, s50, 7\ns_add_u32 s3, s3, {XC}\nv_and_b32 v44, 7, v0\nv_lshl_add_u32 v244, v44, 4, s3")
    XF=o.get("xfast")
    def qloads():
        if XF: A("buffer_load_dwordx4 v[240:243], v244, s[36:39], 0 offen sc1")
        for jj in range(8):
            A(f"buffer_load_dwordx4 v[{QD+8*jj}:{QD+3+8*jj}], v{QA+jj}, s[36:39], 0 offen sc1")
            A(f"buffer_load_dwordx4 v[{QD+4+8*jj}:{QD+7+8*jj}], v{QA+8+jj}, s[36:39], 0 offen sc1")
    def qcheck(oklab):
        A(f"v_xor_b32 v46, v{QD+1}, v62")
        if XF: A("v_bitop3_b32 v46, v46, v241, v62 bitop3:0xf6\nv_bitop3_b32 v46, v46, v243, v62 bitop3:0xf6")
        first=True
        for k in range(16):
            for d in (1,3):
                if first: first=False; continue
                A(f"v_bitop3_b32 v46, v46, v{QD+4*k+d}, v62 bitop3:0xf6")
        A(f"""
        v_cmp_ne_u32 vcc, 0, v46
        s_add_u32 s74, s74, 1
        s_nop 3
        s_cmp_eq_u64 vcc, 0
        s_cbranch_scc1 {oklab}
        """)
    def qfinish():
        for d in (0,2):
            for half in (0,4):
                for jj in range(1,8):
                    A(f"v_add_f32 v{QD+half+d}, v{QD+half+d}, v{QD+8*jj+half+d}")
        A(f"""
        v_cvt_pk_bf16_f32 v46, v{QD}, v{QD+2}
        v_cvt_pk_bf16_f32 v47, v{QD+4}, v{QD+6}
        v_lshlrev_b32 v50, 2, v0
        v_and_b32 v51, 31, v0
        v_lshlrev_b32 v51, 2, v51
        ds_write_b32 v50, v46 offset:{Q_L}
        ds_write_b32 v51, v47 offset:{Q_L+256}
        """)
        if XF:
            A(f"""
            s_getreg_b32 s3, hwreg(HW_REG_XCC_ID)
            s_and_b32 s3, s3, 15
            v_cmp_ne_u32 vcc, s3, v240
            v_mov_b32 v47, 0
            s_nop 3
            s_cmp_eq_u64 vcc, 0
            s_cselect_b32 s3, 1, 0
            v_mov_b32 v46, s3
            ds_write_b32 v47, v46 offset:{XFLAG}
            """)
        A(f"""
        v_mov_b32 v46, 1
        v_mov_b32 v47, 0
        ds_write_b32 v47, v46 offset:{QFLAG}
        """)
    FD=160
    def faddr():
        A(f"""
        s_lshr_b32 s3, s2, 3
        s_mul_i32 s3, s3, 2560
        s_and_b32 s72, s2, 7
        s_lshl_b32 s72, s72, 5
        s_add_u32 s3, s3, s72
        s_add_u32 s3, s3, {FP}
        v_bfe_u32 v44, v0, 2, 1
        v_mul_u32_u24 v44, 61440, v44
        v_bfe_u32 v45, v0, 1, 1
        v_lshl_add_u32 v44, v45, 8, v44
        v_and_b32 v45, 1, v0
        v_lshl_add_u32 v44, v45, 4, v44
        v_add_u32 v{FD+20}, s3, v44
        """)
    def floads():
        for ks in range(5): A(f"buffer_load_dwordx4 v[{FD+4*ks}:{FD+4*ks+3}], v{FD+20}, s[36:39], 0 offen offset:{512*ks} sc1")
    def fcheck(oklab):
        for k in range(20): A(f"v_xor_b32 v{FD+k}, v{FD+k}, v63")
        A(f"v_or3_b32 v45, v{FD}, v{FD+1}, v{FD+2}")
        for k in range(3,19,2): A(f"v_or3_b32 v45, v45, v{FD+k}, v{FD+k+1}")
        A(f"v_or_b32 v45, v45, v{FD+19}")
        A(f"""
        v_and_b32 v45, 0x3ff, v45
        v_cmp_ne_u32 vcc, 0, v45
        s_add_u32 s74, s74, 1
        s_nop 3
        s_cmp_eq_u64 vcc, 0
        s_cbranch_scc1 {oklab}
        """)
    def ffinish():
        F=FD
        for d in range(4):
            for ks in range(1,5): A(f"v_add_f32 v{F+d}, v{F+d}, v{F+4*ks+d}")
        A(f"""
        v_cvt_pk_bf16_f32 v{F+4}, v{F}, v{F+1}
        v_cvt_pk_bf16_f32 v{F+5}, v{F+2}, v{F+3}
        v_lshlrev_b32 v{F}, 16, v{F+4}
        v_and_b32 v{F+1}, 0xffff0000, v{F+4}
        v_lshlrev_b32 v{F+2}, 16, v{F+5}
        v_and_b32 v{F+3}, 0xffff0000, v{F+5}
        """)
        E=F+8; U=F+12
        for d in range(4): A(f"v_mul_f32 v{E+d}, 0xbfb8aa3b, v{F+d}")
        for d in range(4): A(f"v_exp_f32 v{E+d}, v{E+d}")
        for d in range(4): A(f"v_mov_b32_dpp v{U+d}, v{F+d} row_ror:4 row_mask:0xf bank_mask:0xf")
        for d in range(4): A(f"v_add_f32 v{E+d}, 1.0, v{E+d}")
        for d in range(4): A(f"v_rcp_f32 v{E+d}, v{E+d}")
        nop(1)
        for d in range(4): A(f"v_mul_f32 v{E+d}, v{F+d}, v{E+d}")
        A(f"""
        v_cvt_pk_bf16_f32 v{F+4}, v{E}, v{E+1}
        v_cvt_pk_bf16_f32 v{F+5}, v{E+2}, v{E+3}
        v_lshlrev_b32 v{E}, 16, v{F+4}
        v_and_b32 v{E+1}, 0xffff0000, v{F+4}
        v_lshlrev_b32 v{E+2}, 16, v{F+5}
        v_and_b32 v{E+3}, 0xffff0000, v{F+5}
        """)
        for d in range(4): A(f"v_mul_f32 v{E+d}, v{E+d}, v{U+d}")
        A(f"""
        v_cvt_pk_bf16_f32 v{F+4}, v{E}, v{E+1}
        v_cvt_pk_bf16_f32 v{F+5}, v{E+2}, v{E+3}
        """)
    def fwrite():
        A(f"""
        v_bfe_u32 v44, v0, 1, 1
        v_lshlrev_b32 v44, 6, v44
        v_and_b32 v45, 1, v0
        v_lshl_add_u32 v44, v45, 3, v44
        s_mov_b64 exec, 0x0f
        ds_write_b64 v44, v[{FD+4}:{FD+5}] offset:{ACT_L+48}
        s_mov_b64 exec, -1
        """)
    def timeout(code, off):
        A(f"v_mov_b32 v46, {code}\nv_mov_b32 v47, {off}\nglobal_store_dword v47, v46, s[24:25]")

    if AD:
        A(f"v_mov_b32 v49, 0\ns_mov_b32 s10, 0\nv_lshlrev_b32 v48, 4, v0\nv_add_u32 v48, {PROG}, v48\ns_lshl_b32 s3, s2, 2\ns_add_u32 s3, s3, {PROG}\nv_mov_b32 v55, s3")
        flagtick(first=True)
    for g in range(NB1,16):
        stamp(f"Kt{g}")
        if g>NB1: flagtick()
        if g==PT+1:
            A("s_cmp_eq_u32 s48, 0\ns_cbranch_scc0 L_t_norm")
            stamp("qp0")
            qloads()
            for j in range(3): pload(g,j,KS,W-1+16+(1 if XF else 0))
            A("s_waitcnt vmcnt(3)\ns_mov_b32 s74, 0")
            qcheck("L_qok")
            A("L_qpoll:")
            A("s_sleep 2")
            qloads()
            A("s_waitcnt vmcnt(0)")
            qcheck("L_qok")
            A(f"s_cmp_lt_u32 s74, {POLL_LIMIT}\ns_cbranch_scc1 L_qpoll")
            timeout(0x101,0)
            A("L_qok:")
            stamp("qpok")
            if stamps: A("v_mov_b32 v3, s74")
            qfinish()
            A("s_branch L_t_join\nL_t_norm:")
            for j in range(3): pload(g,j,KS,W-1)
            A("L_t_join:")
            continue
        if g==XQ:
            stamp("kb2")
            ldsspin(QFLAG,1)
            A(f"""
            v_and_b32 v46, 7, v0
            v_lshlrev_b32 v46, 4, v46
            ds_read_b128 v[4:7], v46 offset:{Q_L}
            ds_read_b128 v[8:11], v46 offset:{Q_L+128}
            ds_read_b128 v[12:15], v46 offset:{Q_L+256}
            ds_read_b32 v46, v47 offset:{XFLAG}
            s_waitcnt lgkmcnt(0)
            v_readfirstlane_b32 s11, v46
            """)
            stamp("qready")
        pload(g,0,KS,W-1)
        cphooks(g)
        if g==NB1: qaddr()
        if g==NB1+1: masks()
        if g>=XQ:
            npt=16//(2*(16-XQ)) if XQ<16 else 0
            done=(g-XQ)*2
            kproc(done,done+1)
        pload(g,1,KS,W-1)
        pload(g,2,KS,W-1)
    kdone=(16-XQ)*2
    def maxp():
        A("v_max3_f32 v44, v16, v17, v18")
        for k in range(19,31,2): A(f"v_max3_f32 v44, v44, v{k}, v{k+1}")
        A("v_max_f32 v44, v44, v31")
        allreduce("v_max_f32",44,45,dppsteps=("row_ror:8",))
        A(f"""
        v_mov_b32 v61, v44
        v_mov_b32 v45, 0
        v_mov_b32 v46, 1
        s_mov_b64 exec, 1
        ds_max_f32 v45, v44 offset:{MMAX}
        ds_add_u32 v45, v46 offset:{CNT}
        s_mov_b64 exec, -1
        s_mov_b32 s72, {LOG2E:#x}
        v_mul_f32 v45, s72, v61
        """)
        for g in range(16): A(f"v_fma_f32 v{16+g}, v{16+g}, s72, -v45")
        for g in range(16): A(f"v_exp_f32 v{16+g}, v{16+g}")
    def lp():
        A("v_add_f32 v60, v16, v17")
        for g in range(2,16): A(f"v_add_f32 v60, v60, v{16+g}")
        for g in range(16): A(f"v_cvt_pk_bf16_f32 v{16+g}, v{16+g}, v{16+g}")
        allreduce("v_add_f32",60,47,dppsteps=("row_ror:8",))
    def alpha():
        ldsspin(CNT,8)
        A(f"""
        ds_read_b32 v44, v47 offset:{MMAX}
        s_waitcnt lgkmcnt(0)
        v_sub_f32 v59, v61, v44
        v_mul_f32 v59, {LOG2E:#x}, v59
        v_exp_f32 v59, v59
        v_mov_b32 v61, v44
        """)
    D4=o.get("dma4",False)
    def dmaprep():
        if D4: A("s_and_b32 s73, s48, 3")
        else: A("s_lshr_b32 s73, s48, 1")
        A(f"""
        s_cmp_eq_u32 s73, 3
        s_cselect_b32 s40, s20, s12
        s_cselect_b32 s41, s21, s13
        s_mov_b32 s42, 7864320
        s_cselect_b32 s42, 1966080, s42
        s_cselect_b64 s[74:75], -1, 0
        s_and_b32 s41, s41, 0xffff
        s_mul_i32 s14, s50, 245760
        s_min_u32 s3, s2, 191
        s_mul_i32 s3, s3, 10240
        s_cmp_eq_u32 s73, 3
        s_cselect_b32 s14, s3, s14
        """)
        if D4: A(f"s_lshl_b32 s15, s73, 10\ns_add_u32 s15, s15, {WO_L}")
        else: A(f"""
        s_and_b32 s3, s48, 1
        s_mul_i32 s72, s3, 640
        s_add_u32 s14, s14, s72
        s_mul_i32 s15, s3, 20480
        s_lshl_b32 s3, s73, 10
        s_add_u32 s15, s15, s3
        s_add_u32 s15, s15, {WO_L}
        """)
        A(f"""
        s_mul_i32 s3, s51, 24
        s_lshl_b32 s72, s73, 3
        s_add_u32 s3, s3, s72
        v_lshrrev_b32 v45, 3, v0
        v_add_u32 v46, s3, v45
        v_and_b32 v44, 0xe0, v46
        v_and_b32 v47, 3, v46
        v_lshl_add_u32 v44, v47, 3, v44
        v_bfe_u32 v47, v46, 2, 3
        v_add_u32 v44, v44, v47
        v_cndmask_b32 v44, v44, v45, s[74:75]
        v_mul_u32_u24 v45, 1280, v44
        s_and_b32 s3, s73, 1
        s_lshl_b32 s3, s3, 1
        v_bfe_u32 v44, v0, 4, 1
        v_or_b32 v44, s3, v44
        v_lshlrev_b32 v44, 1, v44
        v_and_b32 v46, 7, v0
        v_xor_b32 v44, v44, v46
        v_lshl_add_u32 v2, v44, 4, v45
        """)
    def dmaissue():
        l=A.lab("L_nd")
        if D4: A(f"s_cmp_ge_u32 s48, 4\ns_cbranch_scc1 {l}")
        A("s_mov_b32 m0, s15")
        for t in range(10 if D4 else 5):
            if t>0: A("s_add_u32 m0, m0, 4096\ns_add_u32 s14, s14, 128")
            else: A("s_nop 0")
            A(f"buffer_load_dwordx4 v2, s[40:43], s14 offen {nt} lds")
        if D4: A(f"{l}:")
    def partaddr():
        A(f"""
        v_bfe_u32 v44, v0, 4, 1
        v_and_b32 v45, 7, v0
        v_lshl_add_u32 v44, v44, 3, v45
        v_lshlrev_b32 v44, 4, v44
        v_bfe_u32 v45, v0, 5, 1
        v_mul_u32_u24 v46, {PART_P}, v45
        s_mul_i32 s3, s48, {PART_W}
        v_add3_u32 v56, v44, v46, s3
        v_bfe_u32 v44, v0, 3, 1
        v_cmp_eq_u32 s[76:77], v44, v45
        v_mov_b32 v57, s3
        """)
    def yprep():
        A(f"""
        v_lshrrev_b32 v45, 4, v0
        v_bfe_u32 v46, v0, 2, 2
        v_and_b32 v47, 3, v0
        v_lshl_add_u32 v48, v45, 3, v46
        v_lshlrev_b32 v48, 7, v48
        v_lshl_add_u32 v48, v47, 3, v48
        v_bfe_u32 v49, v0, 3, 1
        v_bfe_u32 v50, v0, 4, 1
        v_lshl_or_b32 v49, v50, 1, v49
        s_mul_i32 s72, s48, 5
        """)
        for tt in range(5):
            A(f"""
            s_add_u32 s3, s72, {tt}
            s_and_b32 s73, s3, 3
            s_lshr_b32 s3, s3, 2
            s_lshl_b32 s3, s3, 12
            v_xor_b32 v50, s73, v49
            v_lshl_add_u32 v50, v50, 5, v48
            v_add_u32 v{80+tt}, s3, v50
            """)
        A(f"""
        v_and_b32 v46, 1, v0
        v_lshlrev_b32 v85, 6, v46
        v_lshl_add_u32 v85, v45, 4, v85
        s_mul_i32 s3, s48, 163840
        s_lshl_b32 s72, s2, 7
        s_add_u32 s3, s3, s72
        s_add_u32 s3, s3, {YP}
        v_lshlrev_b32 v86, 6, v46
        v_lshl_add_u32 v86, v45, 4, v86
        v_bfe_u32 v47, v0, 1, 3
        v_lshl_add_u32 v86, v47, 15, v86
        v_add_u32 v86, s3, v86
        v_cmp_eq_u32 s[4:5], 1, v47
        v_cmp_eq_u32 s[6:7], 2, v47
        v_cmp_eq_u32 s[8:9], 3, v47
        v_cmp_eq_u32 s[12:13], 4, v47
        """)
        if o.get("yperm",True):
            A(f"""
            v_and_b32 v46, 3, v0
            v_lshlrev_b32 v94, 4, v46
            v_lshrrev_b32 v47, 3, v0
            v_min_u32 v47, 4, v47
            v_lshl_add_u32 v94, v47, 1, v94
            v_bfe_u32 v46, v0, 2, 1
            v_add_lshl_u32 v94, v94, v46, 2
            v_and_b32 v46, 7, v0
            v_lshlrev_b32 v46, 4, v46
            v_lshl_add_u32 v86, v47, 15, v46
            s_mul_i32 s3, s48, 163840
            s_lshl_b32 s72, s2, 7
            s_add_u32 s3, s3, s72
            s_add_u32 s3, s3, {YP}
            v_add_u32 v86, s3, v86
            """)
        A(f"""
        v_and_b32 v46, 7, v0
        v_lshrrev_b32 v47, 3, v0
        v_mul_u32_u24 v47, 6, v47
        v_add_lshl_u32 v47, v47, v46, 4
        v_cmp_lt_u32 s[78:79], 5, v46
        v_add_u32 v88, {PART_P}, v47
        v_mov_b32 v46, 768
        s_nop 0
        v_cndmask_b32 v87, v47, v46, s[78:79]
        v_cndmask_b32 v88, v88, v46, s[78:79]
        s_lshl_b32 s3, s50, 13
        s_lshl_b32 s72, s51, 7
        s_add_u32 s72, s72, s3
        s_add_u32 s72, s72, {OP}
        v_lshrrev_b32 v45, 3, v0
        v_lshlrev_b32 v45, 10, v45
        v_and_b32 v46, 7, v0
        v_lshl_add_u32 v45, v46, 4, v45
        v_add_u32 v92, s72, v45
        s_lshl_b32 s72, s51, 10
        s_add_u32 s72, s72, s3
        s_add_u32 s72, s72, {OP}
        v_lshl_add_u32 v93, v0, 4, s72
        s_lshl_b32 s3, s51, 3
        s_lshl_b64 s[16:17], 0xff, s3
        """)

    A("L_codewarm_from:")
    kp=kdone
    vp=0
    pt=None
    FT=o.get("ftick",6)
    XV=o.get("xv",99); W2=o.get("W2",W)
    W0=W
    for i in range(16):
        W = W2 if i>=XV else W0
        Wcur[0]=W
        stamp(f"Vt{i}")
        flagtick()
        def work(i=i):
            nonlocal kp,vp,pt
            if kp<16:
                kproc(kp,kp+1); kp+=2
                if kp==16: pt=i+1
            elif i==pt:
                stamp("Kdone")
                maxp()
        def work2(i=i):
            nonlocal vp
            if pt is not None and i==pt:
                lp()
            elif pt is not None and i>pt:
                n=0
                while 3*vp+2 <= 3*i+1-max(W+max(PAT),WF or 0) and n<2:
                    vproc(vp); vp+=1; n+=1
            if i==9: partaddr()
            if i==10: alpha()
            if i==11: dmaprep()
            if i==13: yprep()
        if i==FT:
            A("s_cmp_eq_u32 s48, 1\ns_cbranch_scc0 L_f_norm")
            A("s_cmp_ge_u32 s2, 192\ns_cbranch_scc1 L_f_zero")
            faddr(); floads()
            sv=(kp,vp,pt)
            pload(i,0,VS,W-1+5); work(); pload(i,1,VS,W-1+5); work2(); pload(i,2,VS,W-1+5)
            A("s_waitcnt vmcnt(3)\ns_mov_b32 s74, 0")
            fcheck("L_fok")
            A("L_fpoll:\ns_sleep 2")
            floads()
            A("s_waitcnt vmcnt(0)")
            fcheck("L_fok")
            A(f"s_cmp_lt_u32 s74, {POLL_LIMIT}\ns_cbranch_scc1 L_fpoll")
            timeout(0x102,4)
            A("L_fok:")
            ffinish(); fwrite()
            A("s_branch L_f_join\nL_f_zero:")
            A(f"v_mov_b32 v{FD+4}, 0\nv_mov_b32 v{FD+5}, 0")
            fwrite()
            A("L_f_norm:")
            kp,vp,pt=sv
            pload(i,0,VS,W-1); work(); pload(i,1,VS,W-1); work2(); pload(i,2,VS,W-1)
            A("L_f_join:")
            continue
        if o.get("heavyfirst") and pt is not None and i==pt:
            pload(i,0,VS,W-1); pload(i,1,VS,W); pload(i,2,VS,W+1); work(); work2()
            continue
        pload(i,0,VS,W-1); cphooks(16+i); work(); pload(i,1,VS,W-1); work2(); pload(i,2,VS,W-1)
    stamp("Vissued")
    DM=o.get("dma","pre")
    if DM=="pre": dmaissue()
    stamp("dmaiss")
    DV=o.get("dmav")
    while vp<16:
        extra=((10 if D4 else 5) if DM=='pre' else 0)
        if DV is not None and vp>DV: extra=5
        vproc(vp, wait=extra+3*(15-vp))
        if DV is not None and vp==DV: dmaissue()
        vp+=1
    A("v_mul_f32 v60, v60, v59\nv_mul_f32 v60, 0.5, v60\nv_mov_b32 v58, v59")
    if DM=="V15" and DV is None: dmaissue()
    else: nop(6)
    for r in range(4,16,2): A(f"v_pk_mul_f32 v[{r}:{r+1}], v[{r}:{r+1}], v[58:59]")
    A("s_mov_b64 exec, s[76:77]")
    for j in range(3):
        A(f"ds_write_b128 v56, v[{4+4*j}:{7+4*j}] offset:{PART_L+256*j}")
    A(f"""
    s_mov_b64 exec, 1
    ds_write_b32 v57, v60 offset:{PART_L+772}
    s_mov_b64 exec, -1
    """)
    stamp("dsadd")
    if DM=="pre": A("s_waitcnt vmcnt(0) lgkmcnt(0)\ns_barrier")
    else: A("s_waitcnt lgkmcnt(0)\ns_barrier")
    stamp("barA")
    def aread():
        for tt in range(5):
            A(f"ds_read_b64_tr_b16 v[{160+4*tt}:{161+4*tt}], v{80+tt} offset:{WO_L}")
            A(f"ds_read_b64_tr_b16 v[{162+4*tt}:{163+4*tt}], v{80+tt} offset:{WO_L+512}")
    CNTD=FIN_L+84
    def dmasync():
        A(f"""
        s_waitcnt vmcnt(0)
        v_mov_b32 v47, 0
        v_mov_b32 v46, 1
        s_mov_b64 exec, 1
        ds_add_u32 v47, v46 offset:{CNTD}
        s_mov_b64 exec, -1
        """)
    A("s_cmp_eq_u32 s48, 4\ns_cbranch_scc1 L_pub")
    if DM=="A":
        A("s_cmp_ge_u32 s48, 4\ns_cbranch_scc1 L_nohop1")
        nop(o.get("dmadelay",24))
        dmaissue()
    if DM=="pre": aread()
    A("s_branch L_nohop1\nL_pub:")
    A("s_andn2_b64 exec, exec, s[16:17]\nbuffer_load_dwordx4 v[52:55], v93, s[36:39], 0 offen sc1\ns_mov_b64 exec, -1")
    R=96
    def rd(k):
        w_,par=k%8,k//8
        A(f"ds_read_b128 v[{R+4*k}:{R+4*k+3}], v{87 if par==0 else 88} offset:{PART_L+w_*PART_W}")
    def pkadd(d,a):
        A(f"v_pk_add_f32 v[{d}:{d+1}], v[{d}:{d+1}], v[{a}:{a+1}]")
        A(f"v_pk_add_f32 v[{d+2}:{d+3}], v[{d+2}:{d+3}], v[{a+2}:{a+3}]")
    for k in range(13): rd(k)
    A("s_mov_b32 s74, 0\ns_mov_b32 s76, 0xff00ff00\ns_mov_b32 s77, 0xff00ff00\ns_waitcnt lgkmcnt(5)")
    rd(13); rd(14); rd(15)
    for k in (1,3,5,7): pkadd(R+4*(k-1), R+4*k)
    pkadd(R,R+8); pkadd(R+16,R+24); pkadd(R,R+16)
    A("s_waitcnt lgkmcnt(0)")
    for k in (9,11,13,15): pkadd(R+4*(k-1), R+4*k)
    pkadd(R+32,R+40); pkadd(R+48,R+56); pkadd(R,R+32); pkadd(R,R+48)
    A(f"v_cndmask_b32 v{R}, v{R}, v61, s[78:79]")
    for k in range(4): A(f"v_bfi_b32 v{48+k}, s55, v{R+k}, v63")
    if XF:
        A("""
        s_cmp_eq_u32 s11, 1
        s_cbranch_scc1 L_pubfast
        buffer_store_dwordx4 v[48:51], v92, s[36:39], 0 offen sc1
        s_branch L_pubdone
        L_pubfast:
        buffer_store_dwordx4 v[48:51], v92, s[36:39], 0 offen
        L_pubdone:
        """)
    else:
        A("buffer_store_dwordx4 v[48:51], v92, s[36:39], 0 offen sc1")
    stamp("pub")
    if DM=="pre": aread()
    A("s_waitcnt vmcnt(1)")
    for k in range(4): A(f"v_cndmask_b32 v{52+k}, v{52+k}, v{48+k}, s[16:17]")
    A(f"""
    L_opoll:
    v_xor_b32 v52, v52, v63
    v_xor_b32 v53, v53, v63
    v_xor_b32 v54, v54, v63
    v_xor_b32 v55, v55, v63
    v_or3_b32 v47, v52, v53, v54
    v_or_b32 v47, v47, v55
    v_and_b32 v47, 0x3ff, v47
    v_cmp_ne_u32 vcc, 0, v47
    s_add_u32 s74, s74, 1
    s_nop 3
    s_cmp_eq_u64 vcc, 0
    s_cbranch_scc1 L_ook
    s_mov_b64 exec, vcc
    s_cmp_lt_u32 s74, {POLL_LIMIT}
    s_cbranch_scc0 L_oto
    buffer_load_dwordx4 v[52:55], v93, s[36:39], 0 offen sc1
    s_waitcnt vmcnt(0)
    s_branch L_opoll
    L_oto:
    s_mov_b64 exec, -1
    v_mov_b32 v56, 0x103
    v_mov_b32 v57, 8
    global_store_dword v57, v56, s[24:25]
    """)
    A(f"""
    L_ook:
    s_mov_b64 exec, -1
    {stampstr("opoll")}
    v_mov_b32_dpp v105, v52 row_newbcast:6 row_mask:0xf bank_mask:0xf
    v_mov_b32_dpp v106, v52 row_newbcast:14 row_mask:0xf bank_mask:0xf
    v_mov_b32_dpp v107, v53 row_newbcast:6 row_mask:0xf bank_mask:0xf
    v_mov_b32_dpp v108, v53 row_newbcast:14 row_mask:0xf bank_mask:0xf
    v_cndmask_b32 v105, v105, v106, s[76:77]
    v_cndmask_b32 v106, v107, v108, s[76:77]
    v_mov_b32 v107, v105
    """)
    allreduce("v_max_f32",107,108,dppsteps=("row_ror:8",),p32=False)
    A(f"""
    v_sub_f32 v105, v105, v107
    v_mul_f32 v105, {LOG2E:#x}, v105
    v_exp_f32 v105, v105
    s_nop 0
    v_mul_f32 v106, v106, v105
    v_mul_f32 v52, v52, v105
    v_mul_f32 v53, v53, v105
    v_mul_f32 v54, v54, v105
    v_mul_f32 v55, v55, v105
    """)
    RR=(106,52,53,54,55)
    for r in RR: A(f"v_add_f32_dpp v{r}, v{r}, v{r} row_ror:8 row_mask:0xf bank_mask:0xf")
    TT=(109,110,111,112,113)
    for k,r in enumerate(RR): A(f"v_mov_b32 v{TT[k]}, v{r}")
    for k,r in enumerate(RR): A(f"v_permlane16_swap_b32 v{r}, v{TT[k]}")
    nop(1)
    for k,r in enumerate(RR): A(f"v_add_f32 v{r}, v{r}, v{TT[k]}")
    A(f"""
    v_rcp_f32 v106, v106
    v_lshrrev_b32 v109, 5, v0
    v_lshlrev_b32 v109, 6, v109
    v_and_b32 v110, 7, v0
    v_lshl_add_u32 v109, v110, 3, v109
    v_mul_f32 v52, v52, v106
    v_mul_f32 v53, v53, v106
    v_mul_f32 v54, v54, v106
    v_mul_f32 v55, v55, v106
    v_cvt_pk_bf16_f32 v52, v52, v53
    v_cvt_pk_bf16_f32 v53, v54, v55
    s_mov_b32 exec_lo, 0x3f3f3f3f
    s_mov_b32 exec_hi, 0x3f3f3f3f
    ds_write_b64 v109, v[52:53] offset:{ACT_L}
    s_mov_b64 exec, -1
    s_branch L_nohop1w
    L_nohop1:
    """)
    if DM in ("A","V15"): A("s_waitcnt vmcnt(0)")
    A("L_nohop1w:")
    if DM in ("A","V15"):
        A("s_waitcnt lgkmcnt(0)\ns_barrier")
        stamp("barB")
        aread()
    else:
        A("s_waitcnt lgkmcnt(0)\ns_barrier")
        stamp("barB")
    A(f"ds_read_b128 v[88:91], v85 offset:{ACT_L}")
    A("s_waitcnt lgkmcnt(0)")
    for tt in range(5):
        A(f"v_mfma_f32_16x16x32_bf16 v[{112+4*tt}:{115+4*tt}], v[{160+4*tt}:{163+4*tt}], v[88:91], 0")
    nop(5)
    MK={1:"s[4:5]",2:"s[6:7]",3:"s[8:9]",4:"s[12:13]"}
    for tt in range(1,5):
        for k in range(4): A(f"v_cndmask_b32 v{112+k}, v{112+k}, v{112+4*tt+k}, {MK[tt]}")
    YP8=o.get("yperm",True)
    if YP8:
        for k in range(4): A(f"ds_bpermute_b32 v{116+k}, v94, v{112+k}")
        A("s_waitcnt lgkmcnt(0)")
        for k in range(4): A(f"v_bfi_b32 v{112+k}, s55, v{116+k}, v63")
        A("s_mov_b32 exec_lo, -1\ns_mov_b32 exec_hi, 0xff")
    else:
        for k in range(4): A(f"v_bfi_b32 v{112+k}, s55, v{112+k}, v63")
        A("s_mov_b32 exec_lo, 0x03ff03ff\ns_mov_b32 exec_hi, 0x03ff03ff")
    A(f"buffer_store_dwordx4 v[112:115], v86, s[36:39], 0 offen {o.get('yst','sc1')}")
    A("s_mov_b64 exec, -1")
    stamp("ystored")
    if o.get("ncons",40)==160:
        NS=o.get("nsets",3); SL=o.get("ssleep",6)
        A(f"""
        s_cmp_ge_u32 s2, 160
        s_cbranch_scc1 L_fin
        s_lshr_b32 s3, s2, 2
        s_lshl_b32 s3, s3, 15
        s_and_b32 s72, s2, 3
        s_lshl_b32 s72, s72, 5
        s_add_u32 s3, s3, s72
        s_lshl_b32 s72, s48, 12
        s_add_u32 s3, s3, s72
        s_add_u32 s3, s3, {YP}
        v_lshrrev_b32 v44, 1, v0
        v_lshlrev_b32 v44, 7, v44
        v_and_b32 v46, 1, v0
        v_lshl_add_u32 v44, v46, 4, v44
        v_add_u32 v44, s3, v44
        s_lshr_b32 s3, s2, 2
        s_lshl_b32 s3, s3, 5
        s_and_b32 s72, s2, 1
        s_lshl_b32 s72, s72, 4
        s_add_u32 s3, s3, s72
        s_bfe_u32 s72, s2, 0x10001
        s_mul_i32 s72, s72, 1280
        s_add_u32 s3, s3, s72
        v_and_b32 v45, 7, v0
        v_lshl_add_u32 v45, v45, 1, s3
        buffer_load_ushort v60, v45, s[44:47], 0 offen
        s_mov_b32 s74, 0
        """)
        SET=[132+4*k for k in range(NS)]
        def yl(b): A(f"buffer_load_dwordx4 v[{b}:{b+3}], v44, s[36:39], 0 offen sc1")
        def ychk(b):
            for k in range(4): A(f"v_xor_b32 v{b+k}, v{b+k}, v63")
            A(f"""
            v_or3_b32 v47, v{b}, v{b+1}, v{b+2}
            v_or_b32 v47, v47, v{b+3}
            v_and_b32 v47, 0x3ff, v47
            v_cmp_ne_u32 vcc, 0, v47
            s_add_u32 s74, s74, 1
            s_nop 3
            s_andn2_b64 exec, exec, vcc
            """)
            for k in range(4): A(f"v_mov_b32 v{100+k}, v{b+k}")
            A("""
            s_cmp_eq_u64 vcc, 0
            s_cbranch_scc1 L_yok
            s_mov_b64 exec, vcc
            """)
        for k,b in enumerate(SET):
            if k>0 and SL: A(f"s_sleep {SL}")
            yl(b)
        A("L_ypoll:")
        for b in SET:
            A(f"s_waitcnt vmcnt({NS-1})"); ychk(b); yl(b)
        A(f"""
        s_cmp_lt_u32 s74, {POLL_LIMIT}
        s_cbranch_scc1 L_ypoll
        s_mov_b64 exec, -1
        v_mov_b32 v56, 0x104
        v_mov_b32 v57, 12
        global_store_dword v57, v56, s[24:25]
        L_yok:
        s_mov_b64 exec, -1
        {stampstr("ypoll")}
        s_nop 0
        """)
        for pat in ("quad_perm:[2,3,0,1]","row_ror:4","row_ror:8"):
            for k in range(4): A(f"v_add_f32_dpp v{100+k}, v{100+k}, v{100+k} {pat} row_mask:0xf bank_mask:0xf")
        A(f"""
        s_lshl_b32 s3, s48, 5
        v_and_b32 v46, 1, v0
        v_lshlrev_b32 v46, 4, v46
        v_permlane16_swap_b32 v100, v101
        v_permlane16_swap_b32 v102, v103
        v_lshrrev_b32 v47, 4, v0
        v_add_f32 v100, v100, v101
        v_add_f32 v102, v102, v103
        v_lshl_add_u32 v46, v47, 2, v46
        v_add_u32 v46, s3, v46
        v_permlane32_swap_b32 v100, v102
        s_nop 1
        v_add_f32 v100, v100, v102
        s_mov_b32 exec_lo, 0x00030003
        s_mov_b32 exec_hi, 0x00030003
        ds_write_b32 v46, v100 offset:{FINP_L}
        s_mov_b64 exec, -1
        s_waitcnt lgkmcnt(0)
        s_barrier
        {stampstr("barC")}
        s_cmp_eq_u32 s48, 0
        s_cbranch_scc0 L_fin
        v_lshlrev_b32 v46, 2, v0
        ds_read_b32 v100, v46 offset:{FINP_L}
        s_mov_b32 s44, s22
        s_and_b32 s45, s23, 0xffff
        v_lshlrev_b32 v104, 16, v60
        s_waitcnt lgkmcnt(0)
        s_nop 0
        v_add_f32_dpp v100, v100, v100 row_ror:8 row_mask:0xf bank_mask:0xf
        s_nop 0
        v_mov_b32 v101, v100
        s_nop 1
        v_permlane16_swap_b32 v100, v101
        s_nop 0
        v_add_f32 v100, v100, v101
        v_mov_b32 v101, v100
        s_nop 1
        v_permlane32_swap_b32 v100, v101
        s_nop 0
        v_add_f32 v100, v100, v101
        v_add_f32 v100, v100, v104
        s_nop 1
        v_mov_b32_dpp v101, v100 quad_perm:[1,1,3,3] row_mask:0xf bank_mask:0xf
        v_and_b32 v45, -4, v45
        v_cvt_pk_bf16_f32 v100, v100, v101
        s_mov_b64 exec, 0x55
        buffer_store_dword v100, v45, s[44:47], 0 offen
        s_cmp_eq_u32 s2, 0
        s_cbranch_scc0 L_fin
        v_mov_b32 v46, s54
        v_mov_b32 v47, 0
        s_mov_b64 exec, 1
        buffer_store_dword v46, v47, s[36:39], 0 offen
        """)
    else:
        A(f"""
        s_cmp_ge_u32 s2, 40
        s_cbranch_scc1 L_fin
        s_lshl_b32 s3, s2, 15
        s_lshl_b32 s72, s48, 12
        s_add_u32 s3, s3, s72
        s_add_u32 s3, s3, {YP}
        v_lshl_add_u32 v44, v0, 4, s3
        s_lshl_b32 s72, s2, 5
        v_and_b32 v45, 7, v0
        v_lshl_add_u32 v45, v45, 2, s72
        v_bfe_u32 v46, v0, 3, 1
        v_mul_u32_u24 v46, 1280, v46
        v_add_u32 v45, v45, v46
        buffer_load_dword v60, v45, s[44:47], 0 offen
        s_mov_b32 s74, 0
        """)
        YS=o.get("ystag",10)
        def yl(b):
            for u in range(4): A(f"buffer_load_dwordx4 v[{b+4*u}:{b+4*u+3}], v44, s[36:39], 0 offen offset:{1024*u} sc1")
        def ychk(b, done):
            l=A.lab("L_yn")
            for k in range(16): A(f"v_xor_b32 v{b+k}, v{b+k}, v63")
            A(f"v_or3_b32 v47, v{b}, v{b+1}, v{b+2}")
            for k in range(3,15,2): A(f"v_or3_b32 v47, v47, v{b+k}, v{b+k+1}")
            A(f"v_or_b32 v47, v47, v{b+15}")
            A(f"""
            v_and_b32 v47, 0x3ff, v47
            v_cmp_ne_u32 vcc, 0, v47
            s_add_u32 s74, s74, 1
            s_nop 3
            s_andn2_b64 exec, exec, vcc
            s_cbranch_execz {l}
            """)
            for k in range(4): A(f"v_add_f32 v{b+k}, v{b+k}, v{b+4+k}")
            for k in range(4): A(f"v_add_f32 v{b+8+k}, v{b+8+k}, v{b+12+k}")
            for k in range(4): A(f"v_add_f32 v{100+k}, v{b+k}, v{b+8+k}")
            A(f"""
            {l}:
            s_cmp_eq_u64 vcc, 0
            s_cbranch_scc1 {done}
            s_mov_b64 exec, vcc
            """)
        SA,SB=132,148
        if YS:
            yl(SA)
            A(f"s_sleep {YS}")
            yl(SB)
            A("L_ypoll:\ns_waitcnt vmcnt(4)")
            ychk(SA,"L_yok"); yl(SA)
            A("s_waitcnt vmcnt(4)")
            ychk(SB,"L_yok"); yl(SB)
        else:
            A("L_ypoll:"); yl(SA); A("s_waitcnt vmcnt(0)"); ychk(SA,"L_yok")
        A(f"""
        s_cmp_lt_u32 s74, {POLL_LIMIT}
        s_cbranch_scc1 L_ypoll
        s_mov_b64 exec, -1
        v_mov_b32 v56, 0x104
        v_mov_b32 v57, 12
        global_store_dword v57, v56, s[24:25]
        L_yok:
        s_mov_b64 exec, -1
        {stampstr("ypoll")}
        """)
        if stamps: A("v_mov_b32 v3, s74")
        for k in range(4): A(f"v_add_f32_dpp v{100+k}, v{100+k}, v{100+k} row_ror:8 row_mask:0xf bank_mask:0xf")
        A("""
        s_lshl_b32 s3, s48, 7
        v_and_b32 v46, 7, v0
        v_lshlrev_b32 v46, 4, v46
        v_permlane16_swap_b32 v100, v101
        v_permlane16_swap_b32 v102, v103
        v_lshrrev_b32 v47, 4, v0
        v_add_f32 v100, v100, v101
        v_add_f32 v102, v102, v103
        v_lshl_add_u32 v46, v47, 2, v46
        v_add_u32 v46, s3, v46
        v_permlane32_swap_b32 v100, v102
        s_nop 1
        v_add_f32 v100, v100, v102
        """)
        A(f"""
        s_mov_b32 exec_lo, 0x00ff00ff
        s_mov_b32 exec_hi, 0x00ff00ff
        ds_write_b32 v46, v100 offset:{FINP_L}
        """)
        A(f"""
        s_mov_b64 exec, -1
        s_waitcnt lgkmcnt(0)
        s_barrier
        {stampstr("barC")}
        s_cmp_eq_u32 s48, 0
        s_cbranch_scc0 L_fin
        v_lshlrev_b32 v46, 3, v0
        ds_read_b64 v[100:101], v46 offset:{FINP_L}
        ds_read_b64 v[102:103], v46 offset:{FINP_L+512}
        s_mov_b32 s44, s22
        s_and_b32 s45, s23, 0xffff
        s_waitcnt lgkmcnt(0)
        v_add_f32 v100, v100, v102
        v_add_f32 v101, v101, v103
        """)
        for sw in ("v_permlane16_swap_b32","v_permlane32_swap_b32"):
            for k in range(2): A(f"v_mov_b32 v{104+k}, v{100+k}")
            nop(2)
            for k in range(2): A(f"{sw} v{100+k}, v{104+k}")
            nop(1)
            for k in range(2): A(f"v_add_f32 v{100+k}, v{100+k}, v{104+k}")
        A(f"""
        v_lshlrev_b32 v104, 16, v60
        v_and_b32 v105, 0xffff0000, v60
        v_add_f32 v100, v100, v104
        v_add_f32 v101, v101, v105
        v_cvt_pk_bf16_f32 v100, v100, v101
        s_mov_b64 exec, 0xffff
        buffer_store_dword v100, v45, s[44:47], 0 offen
        s_cmp_eq_u32 s2, 0
        s_cbranch_scc0 L_fin
        v_mov_b32 v46, s54
        v_mov_b32 v47, 0
        s_mov_b64 exec, 1
        buffer_store_dword v46, v47, s[36:39], 0 offen
        """)
    A(f"""
    L_fin:
    s_mov_b64 exec, -1
    """)
    if stamps:
        stamp("end"); A("s_waitcnt lgkmcnt(0)")
        A(f"""
        s_lshl_b32 s3, s2, 3
        s_add_u32 s3, s3, s48
        s_lshl_b32 s3, s3, 7
        s_add_u32 s3, s3, {STAMP}
        v_mov_b32 v44, s3
        s_getreg_b32 s72, hwreg(HW_REG_XCC_ID)
        s_mov_b64 exec, 1
        """)
        for k in range(0,22,2):
            A(f"v_mov_b32 v46, s{80+k}\nv_mov_b32 v47, s{81+k}\nglobal_store_dwordx2 v44, v[46:47], s[26:27] offset:{4*k}\ns_nop 1")
        A("v_mov_b32 v46, s72\nv_mov_b32 v47, v3\nglobal_store_dwordx2 v44, v[46:47], s[26:27] offset:88")
        A("s_getreg_b32 s72, hwreg(HW_REG_HW_ID)\ns_nop 1\nv_mov_b32 v46, s72\nv_mov_b32 v47, 0\nglobal_store_dwordx2 v44, v[46:47], s[26:27] offset:96")
    A("L_end:\ns_endpgm")
    A(f""".section .rodata,"a"
    .p2align 6
    .amdhsa_kernel {NAME}
    .amdhsa_next_free_vgpr 256
    .amdhsa_next_free_sgpr 102
    .amdhsa_accum_offset 256
    .amdhsa_group_segment_fixed_size 0
    .amdhsa_kernarg_size 96
    .amdhsa_user_sgpr_count 2
    .amdhsa_user_sgpr_kernarg_segment_ptr 1
    .amdhsa_system_sgpr_workgroup_id_x 1
    .amdhsa_float_denorm_mode_32 3
    .end_amdhsa_kernel""")
    open(fn,"w").write("\n".join(A.L)+"\n")

if __name__=="__main__":
    exec(sys.argv[1] if len(sys.argv)>1 else 'gen("k1.s"); gen("k1s.s", stamps=True)')
```
